```python
import torch

def _softmax(x, axis=-1):
    return torch.softmax(x, dim=axis)
def _gelu(x):
    return torch.nn.functional.gelu(x, approximate="tanh")
def _silu(x):
    return torch.nn.functional.silu(x)
def _sigmoid(x):
    return torch.sigmoid(x)
def _layernorm(x, axis=-1, eps=1e-5):
    m = x.mean(dim=axis, keepdim=True)
    v = x.var(dim=axis, keepdim=True, unbiased=False)
    return (x - m) / torch.sqrt(v + eps)
def _scatter_add(tgt, idx, src, axis=0):
    return tgt.clone().index_add_(axis, idx, src)
def _segment_sum(src, seg, n):
    out = torch.zeros((n,) + src.shape[1:], dtype=src.dtype)
    return out.index_add_(0, seg, src)
def _pad(x, pw):
    flat = tuple(v for pair in reversed(pw) for v in pair)
    return torch.nn.functional.pad(x, flat)

kernel_name = 'sequential_preLN__mha_block_cached__glu_gated_glu__decode'

def setup_inputs():

    _w = (lambda a: (lambda t: t.to(torch.bfloat16) if t.is_floating_point() else t)(torch.as_tensor(a)))
    def _A_setup():
        B, Sq, D = 1, 1, 640
        H, Sk, Dh = 32, 32768, 192
        return {
            "x": _w((lambda *s: torch.randn(*s, dtype=torch.bfloat16) * 0.05)(B, Sq, D)),
            "k_cache": _w((lambda *s: torch.randn(*s, dtype=torch.bfloat16) * 3.2)(B, H, Sk, Dh)),
            "v_cache": _w((lambda *s: torch.randn(*s, dtype=torch.bfloat16) * 0.4)(B, H, Sk, Dh)),
            "wq": _w((lambda *s: torch.randn(*s, dtype=torch.bfloat16) * 3.2)(D, H * Dh) * (D ** -0.5)),
            "wo": _w((lambda *s: torch.randn(*s, dtype=torch.bfloat16) * 0.4)(H * Dh, D) * ((H * Dh) ** -0.5)),
        }
    _A_in = _A_setup()

    def _B_setup():
        B, S, D, F = 1, 1, 640, 1536
        return {
            "x": _w((lambda *s: torch.randn(*s, dtype=torch.bfloat16) * 0.05)(B, S, D)),
            "w_gate": _w((lambda *s: torch.randn(*s, dtype=torch.bfloat16) * 0.1)(D, F)),
            "w_up": _w((lambda *s: torch.randn(*s, dtype=torch.bfloat16) * 0.05)(D, F)),
            "w_down": _w((lambda *s: torch.randn(*s, dtype=torch.bfloat16) * 0.05)(F, D)),
        }
    _B_in = _B_setup()

    return {
        "A_x": _A_in["x"],
        "A_k_cache": _A_in["k_cache"],
        "A_v_cache": _A_in["v_cache"],
        "A_wq": _A_in["wq"],
        "A_wo": _A_in["wo"],
        "B_x": _B_in["x"],
        "B_w_gate": _B_in["w_gate"],
        "B_w_up": _B_in["w_up"],
        "B_w_down": _B_in["w_down"],
    }

def reference(A_x, A_k_cache, A_v_cache, A_wq, A_wo, B_x, B_w_gate, B_w_up, B_w_down):
    def _A_ref(x, k_cache, v_cache, wq, wo):
        B, Sq, D = x.shape
        H, Dh = 32, 192
        q = (lambda x, *d: x.permute(*d))((x @ wq).reshape(B, Sq, H, Dh), 0, 2, 1, 3)
        scores = torch.einsum("bhqd,bhkd->bhqk", q, k_cache) * (Dh ** -0.5)
        p = _softmax(scores, axis=-1)
        o = torch.einsum("bhqk,bhkd->bhqd", p, v_cache)
        return (lambda x, *d: x.permute(*d))(o, 0, 2, 1, 3).reshape(B, Sq, H * Dh) @ wo

    def _B_ref(x, w_gate, w_up, w_down):
        g = torch.einsum("bsd,df->bsf", x, w_gate)
        u = torch.einsum("bsd,df->bsf", x, w_up)
        h = _sigmoid(g) * u
        return torch.einsum("bsf,fd->bsd", h, w_down)

    x = A_x
    h = x + _A_ref(_layernorm(x, axis=-1), A_k_cache, A_v_cache, A_wq, A_wo)
    h2 = h + _B_ref(_layernorm(h, axis=-1), B_w_gate, B_w_up, B_w_down)
    return h2
```

```python
import re, sys

TRANS = ("v_exp_f32", "v_log_f32", "v_rcp_f32", "v_rsq_f32", "v_sqrt_f32", "v_sin_f32", "v_cos_f32")


def regs(tok):
    tok = tok.strip()
    neg = tok.startswith("-")
    if neg:
        tok = tok[1:]
    if tok.startswith("abs(") or tok.startswith("|"):
        tok = tok.strip("|").replace("abs(", "").rstrip(")")
    m = re.fullmatch(r"([vsa])(\d+)", tok)
    if m:
        return {m.group(1) + m.group(2)}
    m = re.fullmatch(r"([vsa])\[(\d+):(\d+)\]", tok)
    if m:
        return {m.group(1) + str(i) for i in range(int(m.group(2)), int(m.group(3)) + 1)}
    if tok in ("vcc", "vcc_lo", "vcc_hi"):
        return {"vcc"}
    if tok in ("exec", "exec_lo", "exec_hi"):
        return {"exec"}
    if tok == "m0":
        return {"m0"}
    return set()


class I:
    pass


def parse(line):
    line = line.split(";")[0].strip()
    if not line or line.endswith(":") or line.startswith("."):
        return None
    parts = line.split(None, 1)
    op = parts[0]
    rest = parts[1] if len(parts) > 1 else ""
    ops = []
    cur = ""
    depth = 0
    for ch in rest:
        if ch == "[":
            depth += 1
        if ch == "]":
            depth -= 1
        if ch == "," and depth == 0:
            ops.append(cur.strip())
            cur = ""
        else:
            cur += ch
    if cur.strip():
        ops.append(cur.strip())
    mods = ""
    if ops:
        sp = ops[-1].split(None, 1)
        if len(sp) > 1 and not sp[0].endswith(":"):
            ops[-1] = sp[0]
            mods = sp[1]
    i = I()
    i.text = line
    i.op = op
    i.ops = ops
    i.mods = mods
    base = re.sub(r"_(e32|e64|dpp|sdwa)$", "", op)
    i.base = base
    i.valu = op.startswith("v_")
    i.salu = op.startswith("s_")
    i.vmem = op.startswith(("buffer_", "global_", "flat_"))
    i.ds = op.startswith("ds_")
    i.dpp = op.endswith("_dpp") or any(k in mods for k in ("row_", "quad_perm", "row_newbcast"))
    i.trans = base in TRANS
    i.dot = base.startswith("v_dot")
    i.perml = base.startswith("v_permlane")
    i.rl = base in ("v_readlane_b32", "v_readfirstlane_b32")
    i.w = set()
    i.r = set()
    i.srcC = set()
    R = [regs(o) for o in ops]
    if i.valu:
        if i.perml:
            i.w = R[0] | R[1]
            i.r = R[0] | R[1]
        elif base.startswith("v_cmp"):
            i.w = R[0]
            for x in R[1:]:
                i.r |= x
        elif base in ("v_fmac_f32", "v_dot2c_f32_bf16"):
            i.w = R[0]
            i.r = R[0] | R[1] | R[2]
            i.srcC = R[0]
        elif base == "v_dot2_f32_bf16":
            i.w = R[0]
            i.r = R[1] | R[2] | R[3]
            i.srcC = R[3] - (R[1] | R[2])
        elif base in ("v_add_co_u32", "v_sub_co_u32", "v_addc_co_u32"):
            i.w = R[0] | R[1]
            for x in R[2:]:
                i.r |= x
        elif base == "v_cndmask_b32":
            i.w = R[0]
            for x in R[1:]:
                i.r |= x
            if len(ops) == 3:
                i.r |= {"vcc"}
        elif base == "v_writelane_b32":
            i.w = R[0]
            i.r = R[0] | R[1] | R[2]
        else:
            i.w = R[0]
            for x in R[1:]:
                i.r |= x
        if i.dpp:
            i.r |= i.w
    elif i.vmem:
        if "load" in base:
            i.w = R[0]
            for x in R[1:]:
                i.r |= x
        elif "atomic" in base:
            for x in R:
                i.r |= x
            if "sc0" in mods:
                i.w = R[0]
        else:
            for x in R:
                i.r |= x
            i.sdata = R[0] if base.startswith("buffer_") else R[1]
    elif i.ds:
        if base.startswith("ds_read") or base.startswith("ds_bpermute") or base.startswith("ds_swizzle"):
            i.w = R[0]
            for x in R[1:]:
                i.r |= x
        else:
            for x in R:
                i.r |= x
    elif i.salu:
        if base in ("s_nop", "s_waitcnt", "s_barrier", "s_endpgm", "s_sleep", "s_setprio", "s_branch") or base.startswith("s_cbranch"):
            pass
        elif base.startswith("s_cmp") or base.startswith("s_bitcmp"):
            for x in R:
                i.r |= x
        else:
            i.w = R[0] if R else set()
            for x in R[1:]:
                i.r |= x
    return i


def states(i):
    if i.base == "s_nop":
        return int(i.ops[0], 0) + 1
    return 1


def check(text, verbose=True):
    ins = []
    for ln, line in enumerate(text.split("\n")):
        p = parse(line)
        if p is not None:
            p.ln = ln + 1
            ins.append(p)
    errs = []
    for k, c in enumerate(ins):
        dist = 0
        for j in range(k - 1, max(-1, k - 12), -1):
            p = ins[j]
            need = 0
            why = ""
            vw = {r for r in p.w if r[0] in "va" and r != "vcc"}
            sw = {r for r in p.w if r[0] == "s" or r == "vcc"}
            if p.valu:
                if c.valu and c.dpp and (vw & c.r):
                    need, why = max(need, 2), "VALU->DPP"
                if c.valu and c.perml and (vw & c.r):
                    need, why = max(need, 2), "VALU->permlane"
                if p.trans and c.valu and not c.trans and (vw & c.r):
                    if need < 1:
                        need, why = 1, "trans->VALU"
                if p.trans and (c.vmem or c.ds) and (vw & c.r):
                    if need < 1:
                        need, why = 1, "trans->mem"
                if c.rl and (vw & c.r):
                    if need < 1:
                        need, why = 1, "VALU->readlane"
                if sw and c.valu and (sw & c.r):
                    n = 2
                    if c.base in ("v_readlane_b32", "v_writelane_b32") and len(c.ops) > 2 and (regs(c.ops[2]) & sw):
                        n = 4
                    if n > need:
                        need, why = n, "VALU sgpr->VALU"
                if sw and c.vmem and (sw & c.r):
                    need, why = max(need, 5), "VALU sgpr->VMEM"
                if p.dot and (vw & (c.r | c.w)):
                    same = c.dot and c.base == p.base
                    if same and (vw & c.r) <= c.srcC and not ((vw & c.r) - c.srcC):
                        pass
                    elif same and not (vw & c.r):
                        pass
                    else:
                        if need < 3:
                            need, why = 3, "dot->other"
            if p.vmem and hasattr(p, "sdata") and len(p.sdata) >= 3 and c.valu and (p.sdata & c.w):
                need, why = max(need, 2), "store data WAR"
            if p.salu and "m0" in p.w and c.vmem and "lds" in c.mods:
                need, why = max(need, 1), "m0->lds dma"
            if need > dist:
                errs.append((c.ln, f"line {c.ln}: '{c.text}' after line {p.ln}: '{p.text}' needs {need} has {dist} [{why}]"))
            dist += states(p)
            if dist >= 6:
                break
    if verbose:
        for e in errs:
            print("HAZARD", e[1])
    return errs


if __name__ == "__main__":
    t = open(sys.argv[1]).read()
    e = check(t)
    print(len(e), "hazards")
```

```python
import sys, argparse, struct

KN = "sequential_preLN__mha_block_cached__glu_gated_glu__decode_kernel"
REF = open('sequential_preLN__mha_block_cached__glu_gated_glu__decode.s.ref').read()
HDR = REF.split('; Override')[0]

HB = 32768 * 384
TILE = 32 * 384
STEP = 32 * TILE
NTILE = 1024
LOG2E = 0x3fb8aa3b
SCALE = 0x3d93cd3a

XF = 0
QP = 5120
PB = 11264
RC = 12288
AP = 16384
HN = 17664
GP = 18944
LDS_BYTES = 20992
W_TK = 0x8000
W_EPOCH = 0xF000
W_QX = 0x10000
W_REC = 0x90000
W_PT = 0xD0000
W_H = 0xE8000
H_STR = 0x1100
W_HP = 0xF8000
HP_STR = 0xD00
W_SIZE = 0x110000
W_ST0 = 0x200000
W_ST1 = 0x210000
SPIN = 20000


class E:
    def __init__(self):
        self.L = []

    def __call__(self, s):
        for x in s.split("\n"):
            x = x.strip()
            if x:
                self.L.append("  " + x)

    def label(self, n):
        self.L.append(n + ":")


def f32(x):
    return "0x%08x" % struct.unpack("<I", struct.pack("<f", x))[0]


def gen(stamps=False, pst=False, prio=True, psleep=0, NS=27, h1sleep=0, nopf=False, oldmap=False, nosm=False, nodot=False, pfm=()):
    A = E()

    def stamp(n):
        if stamps and not (pst and n >= 3):
            A(f"s_memrealtime s[{70+2*n}:{71+2*n}]")
            A("s_waitcnt lgkmcnt(0)")

    def pstamp(n):
        if stamps and pst:
            A(f"s_memrealtime s[{70+2*n}:{71+2*n}]")
            A("s_waitcnt lgkmcnt(0)")

    def bf16r(dst, src):
        A(f"v_cvt_pk_bf16_f32 {dst}, {src}, {src}")
        A(f"v_and_b32 {dst}, 0xffff0000, {dst}")

    def srd(n, lo, hi, add, nrec):
        if add is None:
            A(f"s_mov_b32 s{n}, s{lo}")
            A(f"s_mov_b32 s{n+1}, s{hi}")
        else:
            A(f"s_add_u32 s{n}, s{lo}, {add}")
            A(f"s_addc_u32 s{n+1}, s{hi}, 0")
        A(f"s_mov_b32 s{n+2}, {nrec}")
        A(f"s_mov_b32 s{n+3}, 0x20000")

    def dpp_add(dst, src, ctrl, bank="0xf"):
        A(f"v_add_f32_dpp {dst}, {src}, {src} {ctrl} row_mask:0xf bank_mask:{bank}")

    def rowsum16(v):
        for r in (8, 4, 2, 1):
            A("s_nop 1")
            dpp_add(v, v, f"row_ror:{r}")

    def poll_end(lab, vmax, sleep=0):
        A(f"v_cmp_eq_u32 vcc, -1, {vmax}")
        A(f"s_cbranch_vccz {lab}_ok")
        if sleep:
            A(f"s_sleep {sleep}")
        A("s_sub_u32 s58, s58, 1")
        A(f"s_cbranch_scc0 {lab}")
        A.label(f"{lab}_ok")

    def maxchain(dst, rs):
        rs = list(rs)
        A(f"v_max3_u32 {dst}, v{rs[0]}, v{rs[1]}, v{rs[2]}")
        rs = rs[3:]
        while len(rs) >= 2:
            A(f"v_max3_u32 {dst}, {dst}, v{rs[0]}, v{rs[1]}")
            rs = rs[2:]
        if rs:
            A(f"v_max_u32 {dst}, {dst}, v{rs[0]}")

    def pair_perm(units, spare):
        out = []
        for (ar, br) in units:
            o = []
            for a, b in zip(ar, br):
                A(f"v_perm_b32 v{spare}, v{b}, v{a}, s56")
                A(f"v_perm_b32 v{b}, v{b}, v{a}, s57")
                o += [spare, b]
                spare = a
            out.append(o)
        return out

    A.label(KN)
    A("s_cmp_ge_u32 s2, 256")
    A("s_cbranch_scc1 L_end")
    A("s_load_dwordx16 s[16:31], s[0:1], 0")
    A("s_load_dwordx8 s[32:39], s[0:1], 64")
    if stamps:
        A("s_memrealtime s[70:71]")
    A("v_lshrrev_b32 v1, 6, v0")
    A("v_and_b32 v2, 63, v0")
    A("s_and_b32 s60, s2, 31" if oldmap else "s_lshr_b32 s60, s2, 3")
    A("v_readfirstlane_b32 s3, v1")
    A("s_lshr_b32 s61, s2, 5" if oldmap else "s_and_b32 s61, s2, 7")
    A("s_cmp_ge_u32 s3, 4")
    A("s_cbranch_scc1 L_helper")

    VA, VB, VC = 3, 4, 5
    Q0 = 6
    VM, VL = 9, 10
    VQ = 11
    ACC = 12
    VPW, VPR, VFM = 18, 19, 20
    T0, T1, T2, T3 = 21, 22, 23, 24
    VT, VZ, VONE = 25, 26, 27
    S = 32
    P = 48
    KB, VBASE = 128, 192

    def kvload(base, i, srdn, soff):
        vo = (VA, VB, VC)[i // 6]
        off = (i % 6) * 768
        r = base + 4 * i
        A(f"buffer_load_dwordx3 v[{r}:{r+2}], v{vo}, s[{srdn}:{srdn+3}], {soff} offen offset:{off} nt")

    A("s_mul_i32 s62, s60, %d" % HB)
    A("s_lshl_b32 s63, s61, 2")
    A("s_add_u32 s63, s63, s3")
    A("s_mul_i32 s63, s63, %d" % TILE)
    A(f"v_mul_u32_u24 v{VA}, 12, v2")
    A(f"v_add_u32 v{VB}, 4608, v{VA}")
    A(f"v_add_u32 v{VC}, 9216, v{VA}")
    A("s_lshl_b32 s64, s60, 8")
    A(f"s_add_u32 s64, s64, {W_TK}")
    A("s_waitcnt lgkmcnt(0)")
    srd(4, 18, 19, "s62", HB)
    srd(8, 20, 21, "s62", HB)
    A("s_add_u32 s92, s38, s64")
    A("s_addc_u32 s93, s39, 0")
    A("s_barrier")
    for i in range(16):
        kvload(KB, i, 4, "s63")
    for i in range(16):
        kvload(VBASE, i, 8, "s63")
    A(f"v_bfe_u32 v{T0}, v2, 4, 1")
    A(f"v_bfe_u32 v{T1}, v2, 3, 1")
    A(f"v_lshl_add_u32 v{T0}, v{T1}, 1, v{T0}")
    A(f"v_bfe_u32 v{T1}, v2, 2, 1")
    A(f"v_lshl_add_u32 v{T0}, v{T1}, 2, v{T0}")
    A(f"v_bfe_u32 v{T1}, v2, 1, 1")
    A(f"v_lshl_add_u32 v{T0}, v{T1}, 3, v{T0}")
    A(f"v_lshlrev_b32 v{T0}, 3, v{T0}")
    A(f"v_and_b32 v{T1}, 1, v2")
    A(f"v_lshl_add_u32 v{T0}, v{T1}, 2, v{T0}")
    A(f"v_lshrrev_b32 v{T2}, 5, v2")
    A(f"v_lshlrev_b32 v{T2}, 7, v{T2}")
    A(f"s_lshl_b32 s64, s3, 8")
    A(f"s_add_u32 s64, s64, {PB}")
    A(f"v_add_u32 v{VPR}, s64, v{T2}")
    A(f"v_add_u32 v{VPW}, v{VPR}, v{T0}")
    A(f"v_mov_b32 v{T2}, 0xffff")
    A(f"v_mov_b32 v{T3}, 0xffff0000")
    A(f"v_cmp_eq_u32 vcc, 1, v{T1}")
    A("s_mov_b32 s66, 0xcccccccc")
    A("s_mov_b32 s67, 0xcccccccc")
    A(f"v_cndmask_b32 v{VFM}, v{T2}, v{T3}, vcc")
    A(f"v_mov_b32 v{VM}, 0xff800000")
    A(f"v_mov_b32 v{VL}, 0")
    for j in range(6):
        A(f"v_mov_b32 v{ACC+j}, 0")
    A(f"v_and_b32 v{VQ}, 31, v2")
    A(f"v_mul_u32_u24 v{VQ}, 24, v{VQ}")
    A(f"v_mov_b32 v{VZ}, 0")
    A(f"v_mov_b32 v{VONE}, 1")
    A(f"s_mov_b32 s65, {NS-2}")
    A(f"s_mov_b32 s68, {SCALE:#x}")
    A(f"s_mov_b32 s69, {LOG2E:#x}")
    A("s_barrier")
    stamp(1)
    for w in range(8):
        for j in range(3):
            A(f"ds_read_b64 v[{S+6*w+2*j}:{S+6*w+2*j+1}], v{VQ} offset:{QP + 768*w + 8*j}")
    A("s_waitcnt lgkmcnt(0)")
    for st in (1, 2, 4):
        for w in range(0, 8, 2 * st):
            for j in range(6):
                A(f"v_add_f32 v{S+6*w+j}, v{S+6*w+j}, v{S+6*(w+st)+j}")
    for j in range(3):
        A(f"v_cvt_pk_bf16_f32 v{Q0+j}, v{S+2*j}, v{S+2*j+1}")

    def body(W, tag):
        for i in range(16):
            r = KB + 4 * i
            A(f"s_waitcnt vmcnt({W})")
            A(f"v_dot2_f32_bf16 v{S+i}, v{r}, v{Q0}, 0")
            A(f"v_dot2_f32_bf16 v{S+i}, v{r+1}, v{Q0+1}, v{S+i}")
            A(f"v_dot2_f32_bf16 v{S+i}, v{r+2}, v{Q0+2}, v{S+i}")
            kvload(KB, i, 4, "s63")
            if i % 2 == 1 and i >= 3:
                a = S + i - 3
                A(f"v_permlane16_swap_b32 v{a}, v{a+1}")
                A(f"v_add_f32 v{a}, v{a}, v{a+1}")
        if nosm:
            for i in range(16):
                r = VBASE + 4 * i
                A(f"s_waitcnt vmcnt({W})")
                lo, hi = P + 2 * i, P + 2 * i + 1
                for j in range(3):
                    A(f"v_dot2_f32_bf16 v{ACC+2*j}, v{r+j}, v{lo}, v{ACC+2*j}")
                    A(f"v_dot2_f32_bf16 v{ACC+2*j+1}, v{r+j}, v{hi}, v{ACC+2*j+1}")
                kvload(VBASE, i, 8, "s63")
            return
        A("s_nop 0")
        A(f"v_permlane16_swap_b32 v{S+14}, v{S+15}")
        A(f"v_add_f32 v{S+14}, v{S+14}, v{S+15}")
        for q in range(4):
            dpp_add(f"v{S+4*q}", f"v{S+4*q}", "row_ror:8", "0x3")
        for q in range(4):
            dpp_add(f"v{S+4*q}", f"v{S+4*q+2}", "row_ror:8", "0xc")
        A("s_nop 0")
        for r in range(2):
            dpp_add(f"v{S+8*r}", f"v{S+8*r}", "row_half_mirror", "0x5")
        A("s_nop 0")
        for r in range(2):
            dpp_add(f"v{S+8*r}", f"v{S+8*r+4}", "row_half_mirror", "0xa")
        A("s_nop 1")
        dpp_add(f"v{S+1}", f"v{S}", "quad_perm:[2,3,0,1]")
        dpp_add(f"v{S+2}", f"v{S+8}", "quad_perm:[2,3,0,1]")
        A(f"v_cndmask_b32 v{S}, v{S+1}, v{S+2}, s[66:67]")
        A("s_nop 1")
        dpp_add(f"v{T0}", f"v{S}", "quad_perm:[1,0,3,2]")
        bf16r(f"v{T0}", f"v{T0}")
        A(f"v_mul_f32 v{T0}, s68, v{T0}")
        bf16r(f"v{T0}", f"v{T0}")
        A("s_nop 1")
        A(f"v_max_f32_dpp v{T1}, v{T0}, v{T0} row_ror:8 row_mask:0xf bank_mask:0xf")
        A("s_nop 1")
        A(f"v_max_f32_dpp v{T1}, v{T1}, v{T1} row_ror:4 row_mask:0xf bank_mask:0xf")
        A("s_nop 1")
        A(f"v_max_f32_dpp v{T1}, v{T1}, v{T1} row_ror:2 row_mask:0xf bank_mask:0xf")
        A(f"v_mov_b32 v{T2}, v{T1}")
        A("s_nop 1")
        A(f"v_permlane16_swap_b32 v{T1}, v{T2}")
        A(f"v_max_f32 v{T1}, v{T1}, v{T2}")
        A(f"v_mov_b32 v{T2}, v{T1}")
        A("s_nop 1")
        A(f"v_permlane32_swap_b32 v{T1}, v{T2}")
        A(f"v_max_f32 v{T1}, v{T1}, v{T2}")
        A(f"v_cmp_gt_f32 vcc, v{T1}, v{VM}")
        A(f"s_cbranch_vccz L_nors{tag}")
        A(f"v_sub_f32 v{T2}, v{VM}, v{T1}")
        A(f"v_mul_f32 v{T2}, s69, v{T2}")
        A(f"v_exp_f32 v{T2}, v{T2}")
        A(f"v_mov_b32 v{VM}, v{T1}")
        for j in range(6):
            A(f"v_mul_f32 v{ACC+j}, v{ACC+j}, v{T2}")
        A(f"v_mul_f32 v{VL}, v{VL}, v{T2}")
        A.label(f"L_nors{tag}")
        A(f"v_sub_f32 v{T0}, v{T0}, v{VM}")
        A(f"v_mul_f32 v{T0}, s69, v{T0}")
        A(f"v_exp_f32 v{T0}, v{T0}")
        A("s_nop 0")
        A(f"v_cvt_pk_bf16_f32 v{T1}, v{T0}, v{T0}")
        A(f"v_add_f32 v{VL}, v{VL}, v{T0}")
        A(f"v_and_b32 v{T1}, v{T1}, v{VFM}")
        A(f"ds_write_b32 v{VPW}, v{T1}")
        for j in range(8):
            A(f"ds_read_b128 v[{P+4*j}:{P+4*j+3}], v{VPR} offset:{16*j}")
        for i in range(16):
            r = VBASE + 4 * i
            if i % 2 == 0:
                A(f"s_waitcnt vmcnt({W}) lgkmcnt({7 - i//2})")
            else:
                A(f"s_waitcnt vmcnt({W})")
            lo, hi = P + 2 * i, P + 2 * i + 1
            for j in range(3):
                A(f"v_dot2_f32_bf16 v{ACC+2*j}, v{r+j}, v{lo}, v{ACC+2*j}")
                A(f"v_dot2_f32_bf16 v{ACC+2*j+1}, v{r+j}, v{hi}, v{ACC+2*j+1}")
            kvload(VBASE, i, 8, "s63")

    A.label("L_loop")
    A(f"s_add_u32 s63, s63, {STEP}")
    body(31, "s")
    A("s_sub_u32 s65, s65, 1")
    A("s_cmp_lg_u32 s65, 0")
    A("s_cbranch_scc1 L_loop")
    A(f"s_add_u32 s63, s63, {STEP}")
    A("s_mov_b32 s94, 0")
    A("s_branch L_dent")
    A.label("L_dtop")
    A("s_waitcnt vmcnt(32)")
    A(f"v_readfirstlane_b32 s94, v{VT}")
    A(f"s_add_u32 s94, s94, {NS*32}")
    A(f"s_min_u32 s94, s94, {NTILE}")
    A(f"s_mul_i32 s63, s94, {TILE}")
    A.label("L_dent")
    A("s_mov_b64 exec, 1")
    A(f"global_atomic_add v{VT}, v{VZ}, v{VONE}, s[92:93] sc0")
    A("s_mov_b64 exec, -1")
    body(32, "d")
    A(f"s_cmp_lt_u32 s94, {NTILE}")
    A("s_cbranch_scc1 L_dtop")
    stamp(2)
    A(f"v_mov_b32 v{T0}, v{VL}")
    A("s_nop 1")
    A(f"v_permlane32_swap_b32 v{VL}, v{T0}")
    A(f"v_add_f32 v{VL}, v{VL}, v{T0}")
    A(f"v_mov_b32 v{T0}, v{VL}")
    A("s_nop 1")
    A(f"v_permlane16_swap_b32 v{VL}, v{T0}")
    A(f"v_add_f32 v{VL}, v{VL}, v{T0}")
    rowsum16(f"v{VL}")
    A(f"v_mul_f32 v{VL}, 0.5, v{VL}")
    for j in range(3):
        A(f"v_permlane32_swap_b32 v{ACC+2*j}, v{ACC+2*j+1}")
    for j in range(3):
        A(f"v_add_f32 v{ACC+2*j}, v{ACC+2*j}, v{ACC+2*j+1}")
    A(f"v_lshrrev_b32 v{T1}, 5, v2")
    A(f"v_lshl_add_u32 v{T0}, v{T1}, 2, v{VQ}")
    A("s_lshl_b32 s64, s3, 10")
    A(f"s_add_u32 s64, s64, {RC}")
    A(f"v_add_u32 v{T0}, s64, v{T0}")
    for j in range(3):
        A(f"ds_write_b32 v{T0}, v{ACC+2*j} offset:{8*j}")
    A(f"v_mov_b32 v{T1}, s64")
    A("s_mov_b64 exec, 1")
    A(f"ds_write_b32 v{T1}, v{VM} offset:768")
    A(f"ds_write_b32 v{T1}, v{VL} offset:772")
    A("s_waitcnt lgkmcnt(0)")
    A("s_barrier")
    if stamps:
        A("s_cmp_lg_u32 s3, 0")
        A("s_cbranch_scc1 L_end")
        A("s_lshl_b32 s64, s2, 7")
        A(f"s_add_u32 s64, s64, {W_ST0}")
        A("v_mov_b32 v3, s64")
        for n in range(3):
            A(f"v_mov_b32 v4, s{70+2*n}")
            A(f"v_mov_b32 v5, s{71+2*n}")
            A(f"global_store_dwordx2 v3, v[4:5], s[38:39] offset:{8*n}")
            A("s_nop 1")
    A("s_endpgm")

    A.label("L_helper")
    if prio:
        A("s_setprio 3")
    A("s_sub_u32 s3, s3, 4")
    A("v_add_u32 v1, 0xffffff00, v0")
    A(f"v_mov_b32 v23, {W_EPOCH}")
    A("s_mov_b32 s46, -1")
    A("s_mov_b32 s47, 0xff")
    A("s_cmp_eq_u32 s3, 3")
    A("s_cbranch_scc1 L_g3")
    EP = 60
    A("v_lshrrev_b32 v3, 3, v2")
    A("v_and_b32 v4, 7, v2")
    A("v_mul_u32_u24 v5, 12288, v3")
    A("v_lshl_add_u32 v5, v4, 4, v5")
    A("v_lshlrev_b32 v6, 4, v2")
    A("v_lshlrev_b32 v7, 2, v2")
    A("s_mul_i32 s62, s60, 384")
    A("s_lshl_b32 s63, s3, 7")
    A("s_add_u32 s62, s62, s63")
    A("s_mul_i32 s63, s61, %d" % (80 * 12288))
    A("s_sub_u32 s65, %d, s62" % (640 * 12288))
    A("s_waitcnt lgkmcnt(0)")
    srd(8, 16, 17, None, 1280)
    A("buffer_load_dwordx4 v[16:19], v6, s[8:11], 0 offen")
    A("buffer_load_dword v20, v7, s[8:11], 0 offen offset:1024")
    srd(12, 22, 23, "s62", "s65")
    WQ = 64
    for i in range(10):
        A(f"buffer_load_dwordx4 v[{WQ+4*i}:{WQ+4*i+3}], v5, s[12:15], s63 offen" + (" nt" if "wqnt" in pfm else ""))
        if i < 9:
            A("s_add_u32 s63, s63, %d" % (8 * 12288))
    srd(4, 38, 39, None, W_SIZE)
    A(f"buffer_load_dword v{EP}, v23, s[4:7], 0 offen sc1")
    A("s_barrier")

    def ln_sums(F, a, b):
        A(f"v_add_f32 {a}, v{F}, v{F+1}")
        A(f"v_mul_f32 {b}, v{F}, v{F}")
        A(f"v_fmac_f32 {b}, v{F+1}, v{F+1}")
        for i in range(2, 10):
            A(f"v_add_f32 {a}, {a}, v{F+i}")
            A(f"v_fmac_f32 {b}, v{F+i}, v{F+i}")
        A("s_nop 1")
        A(f"v_permlane32_swap_b32 {a}, {b}")
        A(f"v_add_f32 {a}, {a}, {b}")
        A(f"v_mov_b32 {b}, {a}")
        A("s_nop 1")
        A(f"v_permlane16_swap_b32 {a}, {b}")
        A(f"v_add_f32 {a}, {a}, {b}")
        rowsum16(a)
        A(f"v_mov_b32 {b}, {a}")
        A("s_nop 1")
        A(f"v_permlane32_swap_b32 {a}, {b}")

    pstamp(3)
    A("s_waitcnt vmcnt(11)")
    pstamp(4)
    F = 21
    for i in range(5):
        A(f"v_lshlrev_b32 v{F+2*i}, 16, v{16+i}")
        A(f"v_and_b32 v{F+2*i+1}, 0xffff0000, v{16+i}")
    ln_sums(F, "v12", "v13")
    A(f"v_mul_f32 v12, {f32(1/640)}, v12")
    A(f"v_mul_f32 v13, {f32(1/640)}, v13")
    A("v_fma_f32 v13, -v12, v12, v13")
    bf16r("v12", "v12")
    bf16r("v13", "v13")
    A(f"v_add_f32 v13, {f32(1e-5)}, v13")
    bf16r("v13", "v13")
    A("v_sqrt_f32 v13, v13")
    A("s_nop 0")
    bf16r("v13", "v13")
    A("v_rcp_f32 v13, v13")
    for i in range(5):
        A(f"v_sub_f32 v{F+2*i}, v{F+2*i}, v12")
        A(f"v_sub_f32 v{F+2*i+1}, v{F+2*i+1}, v12")
        A(f"v_cvt_pk_bf16_f32 v{16+i}, v{F+2*i}, v{F+2*i+1}")
    for i in range(5):
        A(f"v_lshlrev_b32 v{F+2*i}, 16, v{16+i}")
        A(f"v_and_b32 v{F+2*i+1}, 0xffff0000, v{16+i}")
    for i in range(5):
        A(f"v_mul_f32 v{F+2*i}, v{F+2*i}, v13")
        A(f"v_mul_f32 v{F+2*i+1}, v{F+2*i+1}, v13")
        A(f"v_cvt_pk_bf16_f32 v{16+i}, v{F+2*i}, v{F+2*i+1}")
    for i in range(5):
        A(f"v_and_b32 v{32+4*i}, 0xffff, v{16+i}")
        A(f"v_lshlrev_b32 v{33+4*i}, 16, v{16+i}")
        A(f"v_lshrrev_b32 v{34+4*i}, 16, v{16+i}")
        A(f"v_and_b32 v{35+4*i}, 0xffff0000, v{16+i}")
    A("v_lshlrev_b32 v12, 6, v2")
    for i in range(4):
        A(f"ds_write_b128 v12, v[{32+4*i}:{35+4*i}] offset:{XF+16*i}")
    A(f"ds_write_b128 v6, v[48:51] offset:{XF+4096}")
    A("s_mul_i32 s64, s61, 640")
    A("v_lshlrev_b32 v12, 3, v3")
    A("v_add_u32 v12, s64, v12")
    for i in range(10):
        A(f"ds_read_b64 v[{32+2*i}:{33+2*i}], v12 offset:{XF+64*i}")
    for j in range(8):
        A(f"v_mov_b32 v{52+j}, 0")
    pstamp(5)
    for i in range(10):
        A(f"s_waitcnt vmcnt({10 - i}) lgkmcnt({0 if (stamps and pst) else 9-i})")
        for j in range(4):
            A(f"v_dot2c_f32_bf16 v{52+2*j}, v{WQ+4*i+j}, v{32+2*i}")
            A(f"v_dot2c_f32_bf16 v{53+2*j}, v{WQ+4*i+j}, v{33+2*i}")
    pstamp(6)
    A("v_bfe_u32 v12, v2, 5, 1")
    A("v_bfe_u32 v13, v2, 4, 1")
    A("v_lshl_add_u32 v12, v13, 1, v12")
    A("v_bfe_u32 v13, v2, 3, 1")
    for j in range(4):
        A(f"v_permlane32_swap_b32 v{52+2*j}, v{53+2*j}")
    A("v_lshl_add_u32 v12, v13, 2, v12")
    A("v_lshl_add_u32 v12, v4, 3, v12")
    for j in range(4):
        A(f"v_add_f32 v{52+2*j}, v{52+2*j}, v{53+2*j}")
    A("s_lshl_b32 s64, s2, 11")
    A("s_lshl_b32 s63, s3, 9")
    A("v_permlane16_swap_b32 v52, v54")
    A("v_permlane16_swap_b32 v56, v58")
    A("s_add_u32 s64, s64, s63")
    A(f"s_add_u32 s64, s64, {W_QX}")
    A("v_add_f32 v52, v52, v54")
    A("v_add_f32 v56, v56, v58")
    A("v_lshlrev_b32 v12, 3, v12")
    A("v_add_u32 v12, s64, v12")
    dpp_add("v14", "v52", "row_ror:8", "0x3")
    A("s_nop 1")
    dpp_add("v14", "v56", "row_ror:8", "0xc")
    A("s_waitcnt vmcnt(0)")
    A(f"v_add_u32 v15, 1, v{EP}")
    A("buffer_store_dwordx2 v[14:15], v12, s[4:7], 0 offen sc1")
    pstamp(7)
    A("s_branch L_gather")

    def role_sgprs():
        A("s_add_u32 s40, s60, s61")
        A("s_and_b32 s40, s40, 7")
        A("s_mov_b32 s41, 0")
        A("s_mov_b32 s48, 0")
        A("s_cmp_eq_u32 s40, 0")
        A("s_cselect_b32 s42, 1, 0")
        A("s_cmp_lt_u32 s60, 24")
        A("s_cselect_b32 s42, s42, 0")
        A("s_cmp_lg_u32 s42, 0")
        A("s_cselect_b32 s41, 1, s41")
        A("s_cselect_b32 s48, s60, s48")
        A("s_cmp_le_u32 s40, 1")
        A("s_cselect_b32 s42, 1, 0")
        A("s_cmp_ge_u32 s60, 24")
        A("s_cselect_b32 s42, s42, 0")
        A("s_lshl_b32 s43, s60, 1")
        A("s_add_u32 s43, s43, s40")
        A("s_sub_u32 s43, s43, 48")
        A("s_cmp_lg_u32 s42, 0")
        A("s_cselect_b32 s41, 2, s41")
        A("s_cselect_b32 s48, s43, s48")
        A("s_cmp_eq_u32 s40, 1")
        A("s_cselect_b32 s42, 1, 0")
        A("s_cmp_lt_u32 s60, 4")
        A("s_cselect_b32 s42, s42, 0")
        A("s_add_u32 s43, s60, 16")
        A("s_cmp_lg_u32 s42, 0")
        A("s_cselect_b32 s41, 2, s41")
        A("s_cselect_b32 s48, s43, s48")
        A("s_lshl_b32 s43, s60, 1")
        A("s_add_u32 s43, s43, s40")
        A("s_sub_u32 s43, s43, 6")
        A("s_cmp_ge_u32 s40, 6")
        A("s_cselect_b32 s41, 3, s41")
        A("s_cselect_b32 s48, s43, s48")

    V_A, V_H1, V_B = 3, 4, 5
    R0, R1, R2, R3, R4, R5 = 6, 7, 8, 9, 10, 11
    A.label("L_g3")
    role_sgprs()
    A(f"v_mov_b32 v{R0}, 0")
    A(f"v_mov_b32 v{R1}, 0")
    A("v_mul_u32_u24 v12, 52, v2")
    A("v_lshrrev_b32 v12, 8, v12")
    A("v_mul_u32_u24 v13, 5, v12")
    A("v_sub_u32 v13, v2, v13")
    A("v_mul_u32_u24 v12, 1280, v12")
    A("v_lshl_add_u32 v12, v13, 3, v12")
    A("s_mul_i32 s42, s61, %d" % (8 * 1280))
    A("s_mul_i32 s43, s60, 40")
    A("s_add_u32 s42, s42, s43")
    A(f"s_add_u32 s42, s42, {W_PT}")
    A(f"v_add_u32 v{V_B}, s42, v12")
    A("s_lshl_b32 s42, s2, 10")
    A(f"s_add_u32 s42, s42, {W_REC}")
    A("v_lshlrev_b32 v16, 4, v2")
    A("v_add_u32 v16, s42, v16")
    A("v_and_b32 v14, 1, v2")
    A("v_mul_u32_u24 v14, 5, v14")
    A("v_lshrrev_b32 v15, 4, v2")
    A("v_and_b32 v17, 1, v15")
    A("v_lshrrev_b32 v15, 1, v15")
    A("v_lshl_add_u32 v15, v17, 1, v15")
    A("v_add_u32 v18, v15, v14")
    A("v_add_u32 v19, 4, v14")
    A("v_bfe_u32 v17, v2, 1, 3")
    A(f"v_mul_u32_u24 v17, {H_STR}, v17")
    A("s_mul_i32 s42, s48, 40")
    A(f"s_add_u32 s43, s42, {W_H}")
    A("v_add_u32 v17, s43, v17")
    A(f"v_lshl_add_u32 v{R2}, v18, 2, v17")
    A(f"v_lshl_add_u32 v{R3}, v19, 2, v17")
    A(f"v_mul_u32_u24 v{R4}, 20, v2")
    A("s_mul_i32 s42, s48, 1280")
    A(f"s_add_u32 s42, s42, {W_PT}")
    A(f"v_add_u32 v{R4}, s42, v{R4}")
    A("v_lshlrev_b32 v18, 1, v18")
    A("v_lshlrev_b32 v19, 1, v19")
    A("v_and_b32 v14, 1, v2")
    A(f"v_mul_u32_u24 v14, {HP_STR}, v14")
    A("v_lshrrev_b32 v15, 1, v2")
    A("v_lshl_add_u32 v14, v15, 2, v14")
    A("s_lshl_b32 s42, s48, 7")
    A(f"s_add_u32 s42, s42, {W_HP}")
    A("v_add_u32 v20, s42, v14")
    A("s_lshl_b32 s64, s60, 8")
    A(f"s_add_u32 s64, s64, {W_TK}")
    A("v_mov_b32 v21, s64")
    A("v_mov_b32 v22, 0")
    for i in range(4):
        A(f"v_mov_b32 v{12+i}, -1")
    A("s_waitcnt lgkmcnt(0)")
    srd(4, 38, 39, None, W_SIZE)
    A(f"buffer_load_dword v{EP}, v23, s[4:7], 0 offen sc1")
    A("buffer_store_dwordx4 v[12:15], v16, s[4:7], 0 offen sc1")
    A("s_mov_b64 exec, s[46:47]")
    A(f"buffer_store_dwordx2 v[12:13], v{V_B}, s[4:7], 0 offen sc1")
    A("s_mov_b64 exec, -1")
    A("s_cmp_lg_u32 s61, 0")
    A("s_cbranch_scc1 L_notk")
    A("s_mov_b64 exec, 1")
    A("buffer_store_dword v22, v21, s[4:7], 0 offen sc1")
    A("s_mov_b64 exec, -1")
    A.label("L_notk")
    A("s_cmp_eq_u32 s41, 1")
    A("s_cbranch_scc1 L_clr_gu")
    A("s_cmp_eq_u32 s41, 3")
    A("s_cbranch_scc0 L_clr_done")
    A(f"buffer_store_dword v12, v{R2}, s[4:7], 0 offen sc1")
    A("s_mov_b64 exec, 0xffff")
    A(f"buffer_store_dword v12, v{R3}, s[4:7], 0 offen sc1")
    A("s_mov_b64 exec, -1")
    srd(8, 16, 17, None, 1280)
    A("s_mul_i32 s42, s48, 20")
    A(f"buffer_load_ushort v{R0}, v18, s[8:11], s42 offen")
    A(f"buffer_load_ushort v{R1}, v19, s[8:11], s42 offen")
    A("s_branch L_clr_done")
    A.label("L_clr_gu")
    A(f"v_mov_b32 v{R0}, v20")
    A(f"s_mov_b32 s42, {2*HP_STR}")
    A(f"buffer_store_dword v12, v{R0}, s[4:7], 0 offen sc1")
    A(f"buffer_store_dword v12, v{R0}, s[4:7], s42 offen sc1")
    A.label("L_clr_done")
    A("s_barrier")
    A("s_lshl_b32 s64, s2, 11")
    A(f"s_add_u32 s64, s64, {W_QX + 1536}")
    A("v_mov_b32 v12, s64")
    A("s_waitcnt vmcnt(0)")
    A(f"v_add_u32 v15, 1, v{EP}")
    A("v_mov_b32 v14, 0")
    A("s_mov_b64 exec, 1")
    A("buffer_store_dwordx2 v[14:15], v12, s[4:7], 0 offen sc1")
    A("s_mov_b64 exec, -1")
    A("s_cmp_eq_u32 s41, 3")
    A("s_cbranch_scc0 L_gather")
    A(f"v_lshlrev_b32 v{R0}, 16, v{R0}")
    A(f"v_lshlrev_b32 v{R1}, 16, v{R1}")
    A.label("L_gather")
    A("s_lshl_b32 s62, s3, 1")
    A("s_lshl_b32 s63, s60, 3")
    A("s_add_u32 s63, s63, s62")
    A("s_lshl_b32 s63, s63, 11")
    A(f"s_add_u32 s63, s63, {W_QX}")
    A("s_mul_i32 s64, s62, 768")
    A(f"s_add_u32 s64, s64, {QP}")
    A("v_lshlrev_b32 v32, 4, v2")
    A("v_add_u32 v32, s63, v32")
    A("v_cmp_gt_u32 vcc, 32, v2")
    A("v_add_u32 v33, 1024, v32")
    A(f"v_add_u32 v34, {2048 - 512}, v32")
    A("v_cndmask_b32 v33, v34, v33, vcc")
    A(f"v_add_u32 v34, {2048 + 512}, v32")
    A("v_lshlrev_b32 v35, 3, v2")
    A("v_add_u32 v35, s64, v35")
    A("v_add_u32 v36, 512, v35")
    A(f"v_add_u32 v37, {768 - 256}, v35")
    A("v_cndmask_b32 v36, v37, v36, vcc")
    A(f"v_add_u32 v37, {768 + 256}, v35")
    A("v_lshrrev_b32 v38, 5, v2")
    A("v_lshlrev_b32 v38, 11, v38")
    A(f"s_add_u32 s64, s63, 1540")
    A("v_add_u32 v38, s64, v38")
    A(f"v_add_u32 v15, 1, v{EP}")
    A(f"s_mov_b32 s58, {SPIN}")
    A.label("L_qx")
    for i in range(3):
        A(f"buffer_load_dwordx4 v[{40+4*i}:{43+4*i}], v{32+i}, s[4:7], 0 offen sc1")
    A("buffer_load_dword v39, v38, s[4:7], 0 offen sc1")
    A("s_waitcnt vmcnt(0)")
    A("v_xor_b32 v52, v41, v15")
    A("v_xor_b32 v53, v43, v15")
    A("v_xor_b32 v54, v45, v15")
    A("v_xor_b32 v55, v47, v15")
    A("v_xor_b32 v56, v49, v15")
    A("v_xor_b32 v57, v51, v15")
    A("v_xor_b32 v58, v39, v15")
    A("v_or3_b32 v52, v52, v53, v54")
    A("v_or3_b32 v55, v55, v56, v57")
    A("v_or3_b32 v52, v52, v55, v58")
    A("v_cmp_ne_u32 vcc, 0, v52")
    A("s_cbranch_vccz L_qx_ok")
    A("s_sub_u32 s58, s58, 1")
    A("s_cbranch_scc0 L_qx")
    A.label("L_qx_ok")
    for i in range(3):
        A(f"ds_write2_b32 v{35+i}, v{40+4*i}, v{42+4*i} offset0:0 offset1:1")
    A("v_readfirstlane_b32 s59, v15")
    A("s_waitcnt lgkmcnt(0)")
    pstamp(8)
    A("s_barrier")
    if prio:
        A("s_setprio 0")
    stamp(1)

    A("s_cmp_eq_u32 s3, 3")
    A("s_cbranch_scc1 L_pub")
    role_sgprs()
    for r in (V_B, R0, R1, R2, R3, R4):
        A(f"v_mov_b32 v{r}, 0")
    A("s_branch L_addr")
    A.label("L_pub")
    A("s_cmp_lg_u32 s61, 0")
    A("s_cbranch_scc1 L_addr")
    A("v_mov_b32 v12, 0")
    A("v_mov_b32 v13, 1")
    A("s_mov_b64 exec, 1")
    A("global_atomic_add v12, v13, s[36:37]")
    A("s_mov_b64 exec, -1")
    A.label("L_addr")
    A("s_lshl_b32 s42, s2, 10")
    A(f"s_add_u32 s42, s42, {W_REC}")
    A(f"v_lshlrev_b32 v{V_A}, 2, v1")
    A(f"v_add_u32 v{V_A}, s42, v{V_A}")
    A("v_and_b32 v12, 15, v2")
    A("v_lshrrev_b32 v13, 4, v2")
    A("v_mul_u32_u24 v13, 12, v13")
    A("s_mul_i32 s42, s3, 48")
    A("v_add3_u32 v13, v13, v12, s42")
    A("v_min_u32 v14, 13, v12")
    A("v_add_u32 v14, 180, v14")
    A("v_cmp_gt_u32 vcc, 12, v12")
    A("s_nop 1")
    A("v_cndmask_b32 v13, v14, v13, vcc")
    A(f"v_lshlrev_b32 v{V_H1}, 2, v13")
    A("v_cmp_gt_u32 vcc, 194, v1")
    A("s_mov_b64 s[44:45], vcc")
    A("s_cmp_eq_u32 s41, 2")
    A("s_cbranch_scc1 L_reg_dn")
    A("s_cmp_eq_u32 s41, 1")
    A("s_cbranch_scc0 L_reg_done")
    A("s_lshl_b32 s42, s48, 2")
    A("s_add_u32 s42, s42, s3")
    A("s_and_b32 s42, s42, 7")
    A(f"s_mul_i32 s42, s42, {H_STR}")
    A(f"s_add_u32 s42, s42, {W_H}")
    A("v_lshlrev_b32 v14, 5, v2")
    A(f"v_add_u32 v{R1}, s42, v14")
    A("v_lshlrev_b32 v14, 3, v2")
    A(f"v_add_u32 v{R2}, s42, v14")
    A("v_and_b32 v14, 7, v2")
    A("v_lshlrev_b32 v14, 3, v14")
    A("v_bfe_u32 v15, v2, 5, 1")
    A("v_lshl_add_u32 v14, v15, 2, v14")
    A("v_bfe_u32 v15, v2, 4, 1")
    A("v_lshl_add_u32 v14, v15, 1, v14")
    A("v_bfe_u32 v15, v2, 3, 1")
    A("v_add_u32 v14, v14, v15")
    A("s_lshl_b32 s42, s3, 9")
    A(f"s_add_u32 s42, s42, {GP}")
    A("v_lshlrev_b32 v14, 3, v14")
    A(f"v_add_u32 v{R3}, s42, v14")
    A("v_lshrrev_b32 v14, 3, v2")
    A("s_mul_i32 s42, s3, 80")
    A("v_add_u32 v14, s42, v14")
    A("v_lshlrev_b32 v14, 2, v14")
    A(f"v_add_u32 v{R4}, {HN}, v14")
    A("s_branch L_reg_done")
    A.label("L_reg_dn")
    A("s_and_b32 s42, s48, 3")
    A(f"s_mul_i32 s42, s42, {HP_STR}")
    A("s_mul_i32 s43, s3, 768")
    A("s_add_u32 s42, s42, s43")
    A(f"s_add_u32 s42, s42, {W_HP}")
    A("v_lshrrev_b32 v14, 2, v2")
    A("v_mul_u32_u24 v14, 48, v14")
    A(f"v_add_u32 v{R0}, s42, v14")
    A("v_and_b32 v14, 3, v2")
    A("v_lshlrev_b32 v14, 3, v14")
    A("v_bfe_u32 v15, v2, 5, 1")
    A("v_lshl_add_u32 v14, v15, 2, v14")
    A("v_bfe_u32 v15, v2, 4, 1")
    A("v_lshl_add_u32 v14, v15, 1, v14")
    A("v_bfe_u32 v15, v2, 3, 1")
    A("v_add_u32 v14, v14, v15")
    A("s_lshl_b32 s42, s3, 7")
    A(f"s_add_u32 s42, s42, {GP}")
    A("v_lshlrev_b32 v14, 2, v14")
    A(f"v_add_u32 v{R1}, s42, v14")
    A("s_and_b32 s42, s48, 7")
    A(f"s_mul_i32 s42, s42, {H_STR}")
    A("s_lshl_b32 s43, s48, 7")
    A("s_add_u32 s42, s42, s43")
    A(f"s_add_u32 s42, s42, {W_H}")
    A("v_and_b32 v14, 31, v2")
    A("v_lshlrev_b32 v14, 2, v14")
    A(f"v_add_u32 v{R2}, s42, v14")
    A.label("L_reg_done")

    A("s_mov_b32 s56, 0x05040100")
    A("s_mov_b32 s57, 0x07060302")
    WO_SP, WO_RAW = 207, 208
    A("s_mul_i32 s42, s60, 192")
    A("s_mul_i32 s43, s3, 48")
    A("s_add_u32 s42, s42, s43")
    A("s_mul_i32 s42, s42, 1280")
    A("s_mul_i32 s43, s61, 160")
    A("s_add_u32 s42, s42, s43")
    A("s_sub_u32 s43, %d, s42" % (6144 * 1280))
    srd(8, 24, 25, "s42", "s43")
    A("v_lshlrev_b32 v12, 2, v2")
    if nopf:
        A("s_branch L_pf_wo")
    if "nowo" in pfm:
        pass
    elif "wox4" in pfm:
        A("v_mul_u32_u24 v13, 26, v2")
        A("v_lshrrev_b32 v13, 8, v13")
        A("v_mul_u32_u24 v14, 10, v13")
        A("v_sub_u32 v14, v2, v14")
        A("v_mul_u32_u24 v13, 1280, v13")
        A("v_lshl_add_u32 v12, v14, 4, v13")
        A("s_mov_b32 s42, -1")
        A("s_mov_b32 s43, 0x0fffffff")
        A("s_mov_b64 exec, s[42:43]")
        for r in range(8):
            A(f"s_mov_b32 s42, {r*6*1280}")
            A(f"buffer_load_dwordx4 v[{WO_RAW+4*r}:{WO_RAW+4*r+3}], v12, s[8:11], s42 offen" + (" nt" if "wont" in pfm else ""))
        A("s_mov_b64 exec, -1")
    elif "wocont" in pfm:
        A("s_mul_i32 s42, s60, 192")
        A("s_mul_i32 s43, s61, 24")
        A("s_add_u32 s42, s42, s43")
        A("s_mul_i32 s43, s3, 6")
        A("s_add_u32 s42, s42, s43")
        A("s_mul_i32 s42, s42, 1280")
        A("s_sub_u32 s43, %d, s42" % (6144 * 1280))
        srd(8, 24, 25, "s42", "s43")
        A("v_lshlrev_b32 v12, 4, v2")
        for r in range(8):
            A(f"s_mov_b32 s42, {r*1024}")
            if r == 7:
                A("s_mov_b32 exec_hi, 0")
            A(f"buffer_load_dwordx4 v[{WO_RAW+4*r}:{WO_RAW+4*r+3}], v12, s[8:11], s42 offen" + (" nt" if "wont" in pfm else ""))
        A("s_mov_b64 exec, -1")
    else:
        A("s_mov_b64 exec, s[46:47]")
        for r in range(48):
            if r % 3 == 0:
                A(f"s_mov_b32 s42, {(r//3)*3840}")
            A(f"buffer_load_dword v{WO_RAW+r}, v12, s[8:11], s42 offen offset:{(r%3)*1280}" + (" nt" if "wont" in pfm else ""))
        A("s_mov_b64 exec, -1")
    if "norole" in pfm:
        A("s_branch L_pf_wo")
    A("s_cmp_eq_u32 s41, 1")
    A("s_cbranch_scc1 L_pf_gu")
    A("s_cmp_eq_u32 s41, 2")
    A("s_cbranch_scc1 L_pf_dn")
    A("s_branch L_pf_wo")
    A.label("L_pf_gu")
    GU_SP, GU_RAW = 45, 46
    assert GU_RAW + 160 <= WO_SP
    A("s_lshl_b32 s42, s48, 7")
    A("s_mul_i32 s43, s3, %d" % (160 * 3072))
    A("s_add_u32 s42, s42, s43")
    A("s_sub_u32 s43, %d, s42" % (640 * 3072))
    srd(8, 28, 29, "s42", "s43")
    srd(12, 30, 31, "s42", "s43")
    A("v_lshrrev_b32 v12, 3, v2")
    A("v_mul_u32_u24 v12, 6144, v12")
    A("v_and_b32 v13, 7, v2")
    A("v_lshl_add_u32 v12, v13, 4, v12")
    gu_units = []
    for m, sr in ((0, 8), (1, 12)):
        for ip in range(10):
            r = GU_RAW + 80 * m + 8 * ip
            A(f"s_mov_b32 s42, {ip*49152}")
            nt = " nt" if "rolent" in pfm else ""
            A(f"buffer_load_dwordx4 v[{r}:{r+3}], v12, s[{sr}:{sr+3}], s42 offen" + nt)
            A(f"buffer_load_dwordx4 v[{r+4}:{r+7}], v12, s[{sr}:{sr+3}], s42 offen offset:3072" + nt)
            gu_units.append(([r + i for i in range(4)], [r + 4 + i for i in range(4)]))
    A("s_waitcnt vmcnt(0)")
    GU_P = pair_perm(gu_units, GU_SP)
    A("s_branch L_pf_wo")
    A.label("L_pf_dn")
    DN_SP, DN_RAW = 47, 48
    DN_SP2, DN_RAW2 = 97, 98

    def dn_srd():
        A("s_lshl_b32 s42, s48, 6")
        A("s_mul_i32 s43, s3, %d" % (384 * 1280))
        A("s_add_u32 s42, s42, s43")
        A("s_sub_u32 s43, %d, s42" % (1536 * 1280))
        srd(8, 32, 33, "s42", "s43")
        A("v_lshrrev_b32 v12, 2, v2")
        A("v_mul_u32_u24 v12, %d, v12" % (24 * 1280))
        A("v_and_b32 v13, 3, v2")
        A("v_lshl_add_u32 v12, v13, 4, v12")

    def dn_loads(ips, raw):
        units = []
        for k, ip in enumerate(ips):
            r = raw + 8 * k
            A(f"s_mov_b32 s42, {ip*2560}")
            nt = " nt" if "rolent" in pfm else ""
            A(f"buffer_load_dwordx4 v[{r}:{r+3}], v12, s[8:11], s42 offen" + nt)
            A(f"buffer_load_dwordx4 v[{r+4}:{r+7}], v12, s[8:11], s42 offen offset:1280" + nt)
            units.append(([r + i for i in range(4)], [r + 4 + i for i in range(4)]))
        return units

    dn_srd()
    u1 = dn_loads(range(6), DN_RAW)
    A("s_waitcnt vmcnt(0)")
    DN_P1 = pair_perm(u1, DN_SP)
    A.label("L_pf_wo")
    A("s_waitcnt vmcnt(0)")
    wo_units = [([WO_RAW + 2 * p], [WO_RAW + 2 * p + 1]) for p in range(24)]
    WO_P = pair_perm(wo_units, WO_SP)
    A("s_cmp_lg_u32 s3, 3")
    A("s_cbranch_scc1 L_hs_ok")
    A(f"s_mov_b32 s58, {SPIN}")
    A("v_mov_b32 v12, 0")
    A.label("L_hs")
    A("global_load_dword v13, v12, s[36:37] sc1")
    A("s_waitcnt vmcnt(0)")
    A("v_cmp_gt_u32 vcc, 32, v13")
    A("s_cbranch_vccz L_hs_ok")
    A("s_sleep 32")
    A("s_sub_u32 s58, s58, 1")
    A("s_cbranch_scc0 L_hs")
    A.label("L_hs_ok")
    A(f"s_mov_b32 s69, {LOG2E:#x}")
    A("s_lshl_b32 s42, s60, 13")
    A(f"s_add_u32 s62, s42, {W_REC}")
    A("v_lshlrev_b32 v14, 2, v1")
    stamp(2)
    if prio:
        A("s_setprio 3")
    A("s_barrier")
    stamp(3)

    A("v_mov_b32 v12, 0")
    for w in range(4):
        A(f"ds_read_b32 v{16+w}, v14 offset:{RC+1024*w}")
    for w in range(4):
        A(f"ds_read_b64 v[{20+2*w}:{21+2*w}], v12 offset:{RC+1024*w+768}")
    A("v_cmp_eq_u32 vcc, 192, v1")
    A("s_waitcnt lgkmcnt(0)")
    A("v_max3_f32 v12, v20, v22, v24")
    A("v_max_f32 v12, v12, v26")
    for w in range(4):
        A(f"v_sub_f32 v{28+w}, v{20+2*w}, v12")
    for w in range(4):
        A(f"v_mul_f32 v{28+w}, s69, v{28+w}")
    for w in range(4):
        A(f"v_exp_f32 v{28+w}, v{28+w}")
    A("s_nop 0")
    A("v_mul_f32 v13, v16, v28")
    A("v_fmac_f32 v13, v17, v29")
    A("v_fmac_f32 v13, v18, v30")
    A("v_fmac_f32 v13, v19, v31")
    A("v_cndmask_b32 v13, v13, v12, vcc")
    A("s_mov_b64 exec, s[44:45]")
    A(f"buffer_store_dword v13, v{V_A}, s[4:7], 0 offen sc1")
    A("s_mov_b64 exec, -1")
    stamp(4)
    A(f"s_mov_b32 s58, {SPIN}")
    A("s_add_u32 s63, s62, 4096")
    A.label("L_h1")
    for i in range(8):
        so = "s62" if i < 4 else "s63"
        A(f"buffer_load_dword v{16+i}, v{V_H1}, s[4:7], {so} offen offset:{(i%4)*1024} sc1")
    A("s_waitcnt vmcnt(0)")
    maxchain("v12", range(16, 24))
    poll_end("L_h1", "v12", h1sleep)
    stamp(5)
    A("v_max3_f32 v12, v16, v17, v18")
    A("v_max3_f32 v13, v19, v20, v21")
    A("v_max3_f32 v12, v12, v22, v23")
    A("v_max_f32 v12, v12, v13")
    A("s_nop 1")
    A("v_mov_b32_dpp v12, v12 row_newbcast:12 row_mask:0xf bank_mask:0xf")
    A("s_nop 1")
    for i in range(8):
        A(f"v_sub_f32_dpp v{24+i}, v{16+i}, v12 row_newbcast:12 row_mask:0xf bank_mask:0xf")
    for i in range(8):
        A(f"v_mul_f32 v{24+i}, s69, v{24+i}")
    for i in range(8):
        A(f"v_exp_f32 v{24+i}, v{24+i}")
    A("s_nop 0")
    A("v_mul_f32 v13, v16, v24")
    A("v_mul_f32 v14, v20, v28")
    for i in range(1, 4):
        A(f"v_fmac_f32 v13, v{16+i}, v{24+i}")
        A(f"v_fmac_f32 v14, v{20+i}, v{28+i}")
    A("v_add_f32 v13, v13, v14")
    A("s_nop 1")
    A("v_mov_b32_dpp v14, v13 row_newbcast:13 row_mask:0xf bank_mask:0xf")
    A("v_rcp_f32 v14, v14")
    A("s_nop 0")
    A("v_mul_f32 v13, v13, v14")
    A("s_nop 1")
    A("v_mov_b32_dpp v14, v13 quad_perm:[1,0,3,2] row_mask:0xf bank_mask:0xf")
    A("v_cvt_pk_bf16_f32 v13, v13, v14")
    A("s_nop 0")

    def psg(p):
        return 16 + p if p < 16 else 8 + (p - 16)

    for p in range(24):
        lane = (p // 6) * 16 + 2 * (p % 6)
        A(f"v_readlane_b32 s{psg(p)}, v13, {lane}")
    A("v_mov_b32 v14, 0")
    A("v_mov_b32 v15, 0")
    A("v_mov_b32 v16, 0")
    A("v_mov_b32 v17, 0")
    for p in range(24):
        a = 14 + 2 * (p % 2)
        A(f"v_dot2c_f32_bf16 v{a}, s{psg(p)}, v{WO_P[p][0]}")
        A(f"v_dot2c_f32_bf16 v{a+1}, s{psg(p)}, v{WO_P[p][1]}")
    A("v_lshlrev_b32 v12, 3, v2")
    A("s_mul_i32 s42, s3, 320")
    A("v_add_u32 v13, s42, v12")
    A("s_nop 0")
    A("v_add_f32 v14, v14, v16")
    A("v_add_f32 v15, v15, v17")
    A("s_mov_b64 exec, s[46:47]")
    A(f"ds_write_b64 v13, v[14:15] offset:{AP}")
    A("s_mov_b64 exec, -1")
    A("s_waitcnt lgkmcnt(0)")
    A("s_barrier")
    A("s_cmp_lg_u32 s3, 3")
    A("s_cbranch_scc1 L_role")
    for w in range(4):
        A(f"ds_read_b64 v[{16+2*w}:{17+2*w}], v12 offset:{AP+320*w}")
    A("s_waitcnt lgkmcnt(0)")
    A("v_add_f32 v16, v16, v18")
    A("v_add_f32 v17, v17, v19")
    A("v_add_f32 v20, v20, v22")
    A("v_add_f32 v21, v21, v23")
    A("v_add_f32 v16, v16, v20")
    A("v_add_f32 v17, v17, v21")
    A("s_mov_b64 exec, s[46:47]")
    A(f"buffer_store_dwordx2 v[16:17], v{V_B}, s[4:7], 0 offen sc1")
    A("s_mov_b64 exec, -1")
    stamp(6)
    A.label("L_role")
    A("s_cmp_eq_u32 s41, 1")
    A("s_cbranch_scc1 L_gu")
    A("s_cmp_eq_u32 s41, 2")
    A("s_cbranch_scc1 L_dn")
    A("s_cmp_eq_u32 s41, 3")
    A("s_cbranch_scc0 L_fin")
    A("s_cmp_lg_u32 s3, 3")
    A("s_cbranch_scc1 L_fin")
    A(f"s_mov_b32 s58, {SPIN}")
    A.label("L_h2")
    A(f"buffer_load_dwordx4 v[16:19], v{R4}, s[4:7], 0 offen sc1")
    A(f"buffer_load_dword v20, v{R4}, s[4:7], 0 offen offset:16 sc1")
    A("s_waitcnt vmcnt(0)")
    maxchain("v14", range(16, 21))
    poll_end("L_h2", "v14", psleep)
    stamp(7)
    A("v_mov_b32 v21, v20")
    A("s_nop 0")
    A("v_permlane32_swap_b32 v16, v17")
    A("v_permlane32_swap_b32 v18, v19")
    A("v_permlane32_swap_b32 v20, v21")
    A("v_add_f32 v16, v16, v17")
    A("v_add_f32 v18, v18, v19")
    A("v_add_f32 v20, v20, v21")
    A("v_mov_b32 v21, v20")
    A("s_nop 0")
    A("v_permlane16_swap_b32 v16, v18")
    A("v_permlane16_swap_b32 v20, v21")
    A("v_add_f32 v16, v16, v18")
    A("v_add_f32 v20, v20, v21")
    for ctrl in ("row_ror:8", "row_ror:4", "quad_perm:[2,3,0,1]"):
        A("s_nop 0")
        dpp_add("v16", "v16", ctrl)
        dpp_add("v20", "v20", ctrl)
    bf16r("v16", "v16")
    bf16r("v20", "v20")
    A(f"v_add_f32 v16, v16, v{R0}")
    A(f"v_add_f32 v20, v20, v{R1}")
    bf16r("v16", "v16")
    bf16r("v20", "v20")
    A(f"buffer_store_dword v16, v{R2}, s[4:7], 0 offen sc1")
    A("s_mov_b64 exec, 0xffff")
    A(f"buffer_store_dword v20, v{R3}, s[4:7], 0 offen sc1")
    A("s_mov_b64 exec, -1")
    stamp(8)
    A("s_branch L_fin")
    A.label("L_gu")
    A(f"s_mov_b32 s58, {SPIN}")
    A.label("L_h3")
    A(f"buffer_load_dwordx4 v[22:25], v{R1}, s[4:7], 0 offen sc1")
    A(f"buffer_load_dwordx4 v[26:29], v{R1}, s[4:7], 0 offen offset:16 sc1")
    A(f"buffer_load_dwordx2 v[30:31], v{R2}, s[4:7], 0 offen offset:2048 sc1")
    A("s_waitcnt vmcnt(0)")
    maxchain("v14", range(22, 32))
    poll_end("L_h3", "v14", psleep)
    stamp(7)
    F2 = 22
    ln_sums(F2, "v12", "v13")
    A(f"v_mul_f32 v12, {f32(1/640)}, v12")
    A(f"v_mul_f32 v13, {f32(1/640)}, v13")
    A("v_fma_f32 v13, -v12, v12, v13")
    A(f"v_add_f32 v13, {f32(1e-5)}, v13")
    A("v_rsq_f32 v13, v13")
    A("s_nop 0")
    A("v_mul_f32 v12, v12, v13")
    for i in range(5):
        A(f"v_fma_f32 v{F2+2*i}, v{F2+2*i}, v13, -v12")
        A(f"v_fma_f32 v{F2+2*i+1}, v{F2+2*i+1}, v13, -v12")
        A(f"v_cvt_pk_bf16_f32 v{16+i}, v{F2+2*i}, v{F2+2*i+1}")
    A("v_lshlrev_b32 v12, 4, v2")
    A("v_lshlrev_b32 v13, 2, v2")
    A(f"ds_write_b128 v12, v[16:19] offset:{HN}")
    A(f"ds_write_b32 v13, v20 offset:{HN+1024}")
    HNP = 224
    for k in range(5):
        A(f"ds_read2_b32 v[{HNP+2*k}:{HNP+2*k+1}], v{R4} offset0:{16*k} offset1:{16*k+8}")
    GA = 208
    for c in range(16):
        A(f"v_mov_b32 v{GA+c}, 0")
    for ip in range(10):
        if ip % 2 == 0:
            A(f"s_waitcnt lgkmcnt({4 - ip//2})")
        for m in range(2):
            for c in range(8):
                A(f"v_dot2c_f32_bf16 v{GA+8*m+c}, v{HNP+ip}, v{GU_P[10*m+ip][c]}")
    A("s_nop 2")
    for m in range(2):
        for c in range(4):
            A(f"v_permlane32_swap_b32 v{GA+8*m+c}, v{GA+8*m+c+4}")
    for m in range(2):
        for c in range(4):
            A(f"v_add_f32 v{GA+8*m+c}, v{GA+8*m+c}, v{GA+8*m+c+4}")
    for m in range(2):
        for c in range(2):
            A(f"v_permlane16_swap_b32 v{GA+8*m+c}, v{GA+8*m+c+2}")
    for m in range(2):
        for c in range(2):
            A(f"v_add_f32 v{GA+8*m+c}, v{GA+8*m+c}, v{GA+8*m+c+2}")
    A("s_nop 0")
    dpp_add("v16", f"v{GA}", "row_ror:8", "0x3")
    dpp_add("v17", f"v{GA+8}", "row_ror:8", "0x3")
    A("s_nop 0")
    dpp_add("v16", f"v{GA+1}", "row_ror:8", "0xc")
    dpp_add("v17", f"v{GA+9}", "row_ror:8", "0xc")
    A(f"ds_write_b64 v{R3}, v[16:17]")
    A("s_waitcnt lgkmcnt(0)")
    A("s_barrier")
    A("s_cmp_lg_u32 s3, 3")
    A("s_cbranch_scc1 L_fin")
    A("v_lshlrev_b32 v12, 3, v2")
    for w in range(4):
        A(f"ds_read_b64 v[{16+2*w}:{17+2*w}], v12 offset:{GP+512*w}")
    A(f"s_mov_b32 s42, {2*HP_STR}")
    A("s_waitcnt lgkmcnt(0)")
    A("v_add_f32 v16, v16, v18")
    A("v_add_f32 v20, v20, v22")
    A("v_add_f32 v17, v17, v19")
    A("v_add_f32 v21, v21, v23")
    A("v_add_f32 v16, v16, v20")
    A("v_add_f32 v17, v17, v21")
    bf16r("v16", "v16")
    A("v_mul_f32 v18, 0xbfb8aa3b, v16")
    A("v_exp_f32 v18, v18")
    bf16r("v17", "v17")
    A("v_add_f32 v18, 1.0, v18")
    A("v_rcp_f32 v18, v18")
    A("s_nop 0")
    bf16r("v18", "v18")
    A("v_mul_f32 v18, v18, v17")
    A("s_nop 1")
    A("v_mov_b32_dpp v19, v18 quad_perm:[1,0,3,2] row_mask:0xf bank_mask:0xf")
    A("v_cvt_pk_bf16_f32 v18, v18, v19")
    A("s_nop 1")
    A("v_mov_b32_dpp v19, v18 quad_perm:[0,0,2,2] row_mask:0xf bank_mask:0xf")
    A(f"buffer_store_dword v19, v{R0}, s[4:7], 0 offen sc1")
    A(f"buffer_store_dword v19, v{R0}, s[4:7], s42 offen sc1")
    stamp(8)
    A("s_branch L_fin")
    A.label("L_dn")
    dn_srd()
    u2 = dn_loads(range(6, 12), DN_RAW2)
    A("s_waitcnt vmcnt(0)")
    DN_P2 = pair_perm(u2, DN_SP2)
    DN_P = DN_P1 + DN_P2
    A(f"s_mov_b32 s58, {SPIN}")
    A.label("L_h4")
    for k in range(3):
        A(f"buffer_load_dwordx4 v[{16+4*k}:{19+4*k}], v{R0}, s[4:7], 0 offen offset:{16*k} sc1")
    A(f"buffer_load_dword v28, v{R2}, s[4:7], 0 offen sc1")
    A("s_waitcnt vmcnt(0)")
    maxchain("v14", range(16, 29))
    poll_end("L_h4", "v14", psleep)
    stamp(9)
    for c in range(8):
        A(f"v_mov_b32 v{32+c}, 0")
    for ip in range(12):
        for c in range(8):
            A(f"v_dot2c_f32_bf16 v{32+c}, v{16+ip}, v{DN_P[ip][c]}")
    A("s_nop 2")
    for c in range(4):
        A(f"v_permlane32_swap_b32 v{32+c}, v{36+c}")
    for c in range(4):
        A(f"v_add_f32 v{32+c}, v{32+c}, v{36+c}")
    A("s_nop 0")
    for c in range(2):
        A(f"v_permlane16_swap_b32 v{32+c}, v{34+c}")
    for c in range(2):
        A(f"v_add_f32 v{32+c}, v{32+c}, v{34+c}")
    A("s_nop 0")
    dpp_add("v34", "v32", "row_ror:8", "0x3")
    A("s_nop 1")
    dpp_add("v34", "v33", "row_ror:8", "0xc")
    A("s_nop 1")
    dpp_add("v35", "v34", "row_shl:4", "0x5")
    A("s_nop 1")
    dpp_add("v35", "v34", "row_shr:4", "0xa")
    A(f"ds_write_b32 v{R1}, v35")
    A("s_waitcnt lgkmcnt(0)")
    A("s_barrier")
    A("s_cmp_lg_u32 s3, 3")
    A("s_cbranch_scc1 L_fin")
    A("v_and_b32 v12, 31, v2")
    A("v_lshlrev_b32 v12, 2, v12")
    for w in range(4):
        A(f"ds_read_b32 v{16+w}, v12 offset:{GP+128*w}")
    srd(8, 34, 35, None, 1280)
    A("s_lshl_b32 s42, s48, 6")
    A("v_lshlrev_b32 v12, 1, v2")
    A("s_waitcnt lgkmcnt(0)")
    A("v_add_f32 v16, v16, v17")
    A("v_add_f32 v18, v18, v19")
    A("v_add_f32 v16, v16, v18")
    bf16r("v16", "v16")
    A("v_add_f32 v16, v16, v28")
    A("s_nop 1")
    A("v_mov_b32_dpp v17, v16 quad_perm:[1,0,3,2] row_mask:0xf bank_mask:0xf")
    A("v_cvt_pk_bf16_f32 v16, v16, v17")
    A("s_mov_b32 s44, 0x55555555")
    A("s_mov_b32 s45, 0")
    A("s_mov_b64 exec, s[44:45]")
    A("buffer_store_dword v16, v12, s[8:11], s42 offen")
    A("s_mov_b64 exec, -1")
    stamp(10)
    A("s_cmp_lg_u32 s48, 0")
    A("s_cbranch_scc1 L_fin")
    A(f"v_mov_b32 v12, {W_EPOCH}")
    A("v_mov_b32 v13, s59")
    A("s_mov_b64 exec, 1")
    A("buffer_store_dword v13, v12, s[4:7], 0 offen sc1")
    A("s_mov_b64 exec, -1")
    A.label("L_fin")
    if stamps:
        A("s_waitcnt vmcnt(0)")
        A("s_lshl_b32 s64, s2, 9")
        A("s_lshl_b32 s65, s3, 7")
        A("s_add_u32 s64, s64, s65")
        A(f"s_add_u32 s64, s64, {W_ST1}")
        A("v_mov_b32 v3, s64")
        A("s_mov_b64 exec, 1")
        for n in range(11):
            A(f"v_mov_b32 v4, s{70+2*n}")
            A(f"v_mov_b32 v5, s{71+2*n}")
            A(f"global_store_dwordx2 v3, v[4:5], s[38:39] offset:{8*n}")
            A("s_nop 1")
    A.label("L_end")
    A("s_endpgm")

    body_txt = "\n".join(A.L)
    out = [HDR.rstrip("\n"),
           "; Override launch geometry: 256 persistent workgroups (one per CU), 8 waves each.",
           f"; @launch grid=(256,1,1) block=(512,1,1) lds={LDS_BYTES}",
           '.amdgcn_target "amdgcn-amd-amdhsa--gfx950"',
           ".text", f".globl {KN}", ".p2align 8", f".type {KN},@function",
           body_txt,
           '.section .rodata,"a"', ".p2align 6", f".amdhsa_kernel {KN}",
           "  .amdhsa_next_free_vgpr 256", "  .amdhsa_next_free_sgpr 102", "  .amdhsa_accum_offset 256",
           "  .amdhsa_group_segment_fixed_size 0", "  .amdhsa_kernarg_size 96", "  .amdhsa_user_sgpr_count 2",
           "  .amdhsa_user_sgpr_kernarg_segment_ptr 1", "  .amdhsa_system_sgpr_workgroup_id_x 1",
           ".end_amdhsa_kernel", ""]
    return "\n".join(out)


if __name__ == "__main__":
    ap = argparse.ArgumentParser()
    ap.add_argument("-o", default="k3.s")
    ap.add_argument("--stamps", action="store_true")
    ap.add_argument("--pst", action="store_true")
    ap.add_argument("--noprio", action="store_true")
    ap.add_argument("--psleep", type=int, default=0)
    ap.add_argument("--h1sleep", type=int, default=0)
    ap.add_argument("--ns", type=int, default=27)
    ap.add_argument("--nopf", action="store_true")
    ap.add_argument("--oldmap", action="store_true")
    ap.add_argument("--nosm", action="store_true")
    ap.add_argument("--pfm", default="wont,rolent,wqnt")
    a = ap.parse_args()
    t = gen(stamps=a.stamps, pst=a.pst, prio=not a.noprio, psleep=a.psleep, NS=a.ns, h1sleep=a.h1sleep, nopf=a.nopf, oldmap=a.oldmap, nosm=a.nosm, pfm=tuple(a.pfm.split(',')))
    open(a.o, "w").write(t)
    import hazard
    e = hazard.check(t)
    print(a.o, len(t), "bytes;", len(e), "hazards")
```

```python
import sys, argparse, struct

KN = "sequential_preLN__mha_block_cached__glu_gated_glu__decode_kernel"
REF = open('sequential_preLN__mha_block_cached__glu_gated_glu__decode.s.ref').read()
HDR = REF.split('; Override')[0]

HB = 32768 * 384
TILE = 32 * 384
STEP = 32 * TILE
NTILE = 1024
LOG2E = 0x3fb8aa3b
SCALE = 0x3d93cd3a

XF = 0
QP = 5120
PB = 11264
RC = 12288
AP = 16384
HN = 18432
GP = 19712
FL = 21760
LDS_BYTES = 21792
W_TK = 0x8000
W_EPOCH = 0xF000
W_QX = 0x10000
W_REC = 0x90000
W_PT = 0xD0000
W_H = 0xE8000
H_STR = 0x1100
W_HP = 0xF8000
HP_STR = 0xD00
W_SIZE = 0x110000
W_ST0 = 0x200000
W_ST1 = 0x210000
SPIN = 20000


class E:
    def __init__(self):
        self.L = []

    def __call__(self, s):
        for x in s.split("\n"):
            x = x.strip()
            if x:
                self.L.append("  " + x)

    def label(self, n):
        self.L.append(n + ":")


def f32(x):
    return "0x%08x" % struct.unpack("<I", struct.pack("<f", x))[0]


def gen(stamps=False, pst=False, prio=True, psleep=0, NS=27, h1sleep=0, early=0, sig="tick", gue=10, dne=0, woe=False,
        nopf=False, tsleep=8):
    A = E()

    def stamp(n):
        if stamps and not (pst and n >= 3):
            A(f"s_memrealtime s[{70+2*n}:{71+2*n}]")
            A("s_waitcnt lgkmcnt(0)")

    def pstamp(n):
        if stamps and pst:
            A(f"s_memrealtime s[{70+2*n}:{71+2*n}]")
            A("s_waitcnt lgkmcnt(0)")

    def bf16r(dst, src):
        A(f"v_cvt_pk_bf16_f32 {dst}, {src}, {src}")
        A(f"v_and_b32 {dst}, 0xffff0000, {dst}")

    def srd(n, lo, hi, add, nrec):
        if add is None:
            A(f"s_mov_b32 s{n}, s{lo}")
            A(f"s_mov_b32 s{n+1}, s{hi}")
        else:
            A(f"s_add_u32 s{n}, s{lo}, {add}")
            A(f"s_addc_u32 s{n+1}, s{hi}, 0")
        A(f"s_mov_b32 s{n+2}, {nrec}")
        A(f"s_mov_b32 s{n+3}, 0x20000")

    def dpp_add(dst, src, ctrl, bank="0xf"):
        A(f"v_add_f32_dpp {dst}, {src}, {src} {ctrl} row_mask:0xf bank_mask:{bank}")

    def rowsum16(v):
        for r in (8, 4, 2, 1):
            A("s_nop 1")
            dpp_add(v, v, f"row_ror:{r}")

    def poll_end(lab, vmax, sleep=0):
        A(f"v_cmp_eq_u32 vcc, -1, {vmax}")
        A(f"s_cbranch_vccz {lab}_ok")
        if sleep:
            A(f"s_sleep {sleep}")
        A("s_sub_u32 s58, s58, 1")
        A(f"s_cbranch_scc0 {lab}")
        A.label(f"{lab}_ok")

    def maxchain(dst, rs):
        rs = list(rs)
        A(f"v_max3_u32 {dst}, v{rs[0]}, v{rs[1]}, v{rs[2]}")
        rs = rs[3:]
        while len(rs) >= 2:
            A(f"v_max3_u32 {dst}, {dst}, v{rs[0]}, v{rs[1]}")
            rs = rs[2:]
        if rs:
            A(f"v_max_u32 {dst}, {dst}, v{rs[0]}")

    def pair_perm(units, spare, waits=None):
        out = []
        for k, (ar, br) in enumerate(units):
            if waits is not None and waits[k] is not None:
                A(f"s_waitcnt vmcnt({waits[k]})")
            o = []
            for a, b in zip(ar, br):
                A(f"v_perm_b32 v{spare}, v{b}, v{a}, s56")
                A(f"v_perm_b32 v{b}, v{b}, v{a}, s57")
                o += [spare, b]
                spare = a
            out.append(o)
        return out, spare

    def lds_wait(lab, off, sleep):
        A(f"s_mov_b32 s58, {SPIN}")
        A.label(lab)
        A(f"ds_read_b32 v12, v11 offset:{FL+off}")
        A("s_waitcnt lgkmcnt(0)")
        A("v_cmp_ne_u32 vcc, 0, v12")
        A(f"s_cbranch_vccnz {lab}_ok")
        if sleep:
            A(f"s_sleep {sleep}")
        A("s_sub_u32 s58, s58, 1")
        A(f"s_cbranch_scc0 {lab}")
        A.label(f"{lab}_ok")

    def handshake(lab):
        A(f"s_mov_b32 s58, {SPIN}")
        A.label(lab)
        A("global_load_dword v13, v11, s[36:37] sc1")
        A("s_waitcnt vmcnt(0)")
        A("v_cmp_gt_u32 vcc, 32, v13")
        A(f"s_cbranch_vccz {lab}_ok")
        A("s_sleep 32")
        A("s_sub_u32 s58, s58, 1")
        A(f"s_cbranch_scc0 {lab}")
        A.label(f"{lab}_ok")

    A.label(KN)
    A("s_cmp_ge_u32 s2, 256")
    A("s_cbranch_scc1 L_end")
    A("s_load_dwordx16 s[16:31], s[0:1], 0")
    A("s_load_dwordx8 s[32:39], s[0:1], 64")
    if stamps:
        A("s_memrealtime s[70:71]")
    A("v_lshrrev_b32 v1, 6, v0")
    A("v_and_b32 v2, 63, v0")
    A("s_lshr_b32 s60, s2, 3")
    A("v_readfirstlane_b32 s3, v1")
    A("s_and_b32 s61, s2, 7")
    A("s_cmp_ge_u32 s3, 4")
    A("s_cbranch_scc1 L_helper")

    VA, VB, VC = 3, 4, 5
    Q0 = 6
    VM, VL = 9, 10
    VQ = 11
    ACC = 12
    VPW, VPR, VFM = 18, 19, 20
    T0, T1, T2, T3 = 21, 22, 23, 24
    VT, VZ, VONE = 25, 26, 27
    S = 32
    P = 48
    KB, VBASE = 128, 192

    def kvload(base, i, srdn, soff):
        vo = (VA, VB, VC)[i // 6]
        off = (i % 6) * 768
        r = base + 4 * i
        A(f"buffer_load_dwordx3 v[{r}:{r+2}], v{vo}, s[{srdn}:{srdn+3}], {soff} offen offset:{off} nt")

    A("s_mul_i32 s62, s60, %d" % HB)
    A("s_lshl_b32 s63, s61, 2")
    A("s_add_u32 s63, s63, s3")
    A("s_mul_i32 s63, s63, %d" % TILE)
    A(f"v_mul_u32_u24 v{VA}, 12, v2")
    A(f"v_add_u32 v{VB}, 4608, v{VA}")
    A(f"v_add_u32 v{VC}, 9216, v{VA}")
    A("s_lshl_b32 s64, s60, 8")
    A(f"s_add_u32 s64, s64, {W_TK}")
    A("s_waitcnt lgkmcnt(0)")
    srd(4, 18, 19, "s62", HB)
    srd(8, 20, 21, "s62", HB)
    A("s_add_u32 s92, s38, s64")
    A("s_addc_u32 s93, s39, 0")
    A("s_barrier")
    for i in range(16):
        kvload(KB, i, 4, "s63")
    for i in range(16):
        kvload(VBASE, i, 8, "s63")
    A(f"v_bfe_u32 v{T0}, v2, 4, 1")
    A(f"v_bfe_u32 v{T1}, v2, 3, 1")
    A(f"v_lshl_add_u32 v{T0}, v{T1}, 1, v{T0}")
    A(f"v_bfe_u32 v{T1}, v2, 2, 1")
    A(f"v_lshl_add_u32 v{T0}, v{T1}, 2, v{T0}")
    A(f"v_bfe_u32 v{T1}, v2, 1, 1")
    A(f"v_lshl_add_u32 v{T0}, v{T1}, 3, v{T0}")
    A(f"v_lshlrev_b32 v{T0}, 3, v{T0}")
    A(f"v_and_b32 v{T1}, 1, v2")
    A(f"v_lshl_add_u32 v{T0}, v{T1}, 2, v{T0}")
    A(f"v_lshrrev_b32 v{T2}, 5, v2")
    A(f"v_lshlrev_b32 v{T2}, 7, v{T2}")
    A(f"s_lshl_b32 s64, s3, 8")
    A(f"s_add_u32 s64, s64, {PB}")
    A(f"v_add_u32 v{VPR}, s64, v{T2}")
    A(f"v_add_u32 v{VPW}, v{VPR}, v{T0}")
    A(f"v_mov_b32 v{T2}, 0xffff")
    A(f"v_mov_b32 v{T3}, 0xffff0000")
    A(f"v_cmp_eq_u32 vcc, 1, v{T1}")
    A("s_mov_b32 s66, 0xcccccccc")
    A("s_mov_b32 s67, 0xcccccccc")
    A(f"v_cndmask_b32 v{VFM}, v{T2}, v{T3}, vcc")
    A(f"v_mov_b32 v{VM}, 0xff800000")
    A(f"v_mov_b32 v{VL}, 0")
    for j in range(6):
        A(f"v_mov_b32 v{ACC+j}, 0")
    A(f"v_and_b32 v{VQ}, 31, v2")
    A(f"v_mul_u32_u24 v{VQ}, 24, v{VQ}")
    A(f"v_mov_b32 v{VZ}, 0")
    A(f"v_mov_b32 v{VONE}, 1")
    A(f"s_mov_b32 s65, {NS-2}")
    A(f"s_mov_b32 s68, {SCALE:#x}")
    A(f"s_mov_b32 s69, {LOG2E:#x}")
    A("s_barrier")
    stamp(1)
    for w in range(8):
        for j in range(3):
            A(f"ds_read_b64 v[{S+6*w+2*j}:{S+6*w+2*j+1}], v{VQ} offset:{QP + 768*w + 8*j}")
    A("s_waitcnt lgkmcnt(0)")
    for st in (1, 2, 4):
        for w in range(0, 8, 2 * st):
            for j in range(6):
                A(f"v_add_f32 v{S+6*w+j}, v{S+6*w+j}, v{S+6*(w+st)+j}")
    for j in range(3):
        A(f"v_cvt_pk_bf16_f32 v{Q0+j}, v{S+2*j}, v{S+2*j+1}")

    def body(W, tag):
        for i in range(16):
            r = KB + 4 * i
            A(f"s_waitcnt vmcnt({W})")
            A(f"v_dot2_f32_bf16 v{S+i}, v{r}, v{Q0}, 0")
            A(f"v_dot2_f32_bf16 v{S+i}, v{r+1}, v{Q0+1}, v{S+i}")
            A(f"v_dot2_f32_bf16 v{S+i}, v{r+2}, v{Q0+2}, v{S+i}")
            kvload(KB, i, 4, "s63")
            if i % 2 == 1 and i >= 3:
                a = S + i - 3
                A(f"v_permlane16_swap_b32 v{a}, v{a+1}")
                A(f"v_add_f32 v{a}, v{a}, v{a+1}")
        A("s_nop 0")
        A(f"v_permlane16_swap_b32 v{S+14}, v{S+15}")
        A(f"v_add_f32 v{S+14}, v{S+14}, v{S+15}")
        for q in range(4):
            dpp_add(f"v{S+4*q}", f"v{S+4*q}", "row_ror:8", "0x3")
        for q in range(4):
            dpp_add(f"v{S+4*q}", f"v{S+4*q+2}", "row_ror:8", "0xc")
        A("s_nop 0")
        for r in range(2):
            dpp_add(f"v{S+8*r}", f"v{S+8*r}", "row_half_mirror", "0x5")
        A("s_nop 0")
        for r in range(2):
            dpp_add(f"v{S+8*r}", f"v{S+8*r+4}", "row_half_mirror", "0xa")
        A("s_nop 1")
        dpp_add(f"v{S+1}", f"v{S}", "quad_perm:[2,3,0,1]")
        dpp_add(f"v{S+2}", f"v{S+8}", "quad_perm:[2,3,0,1]")
        A(f"v_cndmask_b32 v{S}, v{S+1}, v{S+2}, s[66:67]")
        A("s_nop 1")
        dpp_add(f"v{T0}", f"v{S}", "quad_perm:[1,0,3,2]")
        bf16r(f"v{T0}", f"v{T0}")
        A(f"v_mul_f32 v{T0}, s68, v{T0}")
        bf16r(f"v{T0}", f"v{T0}")
        A("s_nop 1")
        A(f"v_max_f32_dpp v{T1}, v{T0}, v{T0} row_ror:8 row_mask:0xf bank_mask:0xf")
        A("s_nop 1")
        A(f"v_max_f32_dpp v{T1}, v{T1}, v{T1} row_ror:4 row_mask:0xf bank_mask:0xf")
        A("s_nop 1")
        A(f"v_max_f32_dpp v{T1}, v{T1}, v{T1} row_ror:2 row_mask:0xf bank_mask:0xf")
        A(f"v_mov_b32 v{T2}, v{T1}")
        A("s_nop 1")
        A(f"v_permlane16_swap_b32 v{T1}, v{T2}")
        A(f"v_max_f32 v{T1}, v{T1}, v{T2}")
        A(f"v_mov_b32 v{T2}, v{T1}")
        A("s_nop 1")
        A(f"v_permlane32_swap_b32 v{T1}, v{T2}")
        A(f"v_max_f32 v{T1}, v{T1}, v{T2}")
        A(f"v_cmp_gt_f32 vcc, v{T1}, v{VM}")
        A(f"s_cbranch_vccz L_nors{tag}")
        A(f"v_sub_f32 v{T2}, v{VM}, v{T1}")
        A(f"v_mul_f32 v{T2}, s69, v{T2}")
        A(f"v_exp_f32 v{T2}, v{T2}")
        A(f"v_mov_b32 v{VM}, v{T1}")
        for j in range(6):
            A(f"v_mul_f32 v{ACC+j}, v{ACC+j}, v{T2}")
        A(f"v_mul_f32 v{VL}, v{VL}, v{T2}")
        A.label(f"L_nors{tag}")
        A(f"v_sub_f32 v{T0}, v{T0}, v{VM}")
        A(f"v_mul_f32 v{T0}, s69, v{T0}")
        A(f"v_exp_f32 v{T0}, v{T0}")
        A("s_nop 0")
        A(f"v_cvt_pk_bf16_f32 v{T1}, v{T0}, v{T0}")
        A(f"v_add_f32 v{VL}, v{VL}, v{T0}")
        A(f"v_and_b32 v{T1}, v{T1}, v{VFM}")
        A(f"ds_write_b32 v{VPW}, v{T1}")
        for j in range(8):
            A(f"ds_read_b128 v[{P+4*j}:{P+4*j+3}], v{VPR} offset:{16*j}")
        for i in range(16):
            r = VBASE + 4 * i
            if i % 2 == 0:
                A(f"s_waitcnt vmcnt({W}) lgkmcnt({7 - i//2})")
            else:
                A(f"s_waitcnt vmcnt({W})")
            lo, hi = P + 2 * i, P + 2 * i + 1
            for j in range(3):
                A(f"v_dot2_f32_bf16 v{ACC+2*j}, v{r+j}, v{lo}, v{ACC+2*j}")
                A(f"v_dot2_f32_bf16 v{ACC+2*j+1}, v{r+j}, v{hi}, v{ACC+2*j+1}")
            kvload(VBASE, i, 8, "s63")

    A.label("L_loop")
    A(f"s_add_u32 s63, s63, {STEP}")
    body(31, "s")
    A("s_sub_u32 s65, s65, 1")
    A("s_cmp_lg_u32 s65, 0")
    A("s_cbranch_scc1 L_loop")
    A(f"s_add_u32 s63, s63, {STEP}")
    A("s_mov_b32 s94, 0")
    A("s_branch L_dent")
    A.label("L_dtop")
    A("s_waitcnt vmcnt(32)")
    A(f"v_readfirstlane_b32 s94, v{VT}")
    A(f"s_add_u32 s94, s94, {NS*32}")
    A(f"s_min_u32 s94, s94, {NTILE}")
    A(f"s_mul_i32 s63, s94, {TILE}")
    A.label("L_dent")
    A("s_mov_b64 exec, 1")
    A(f"global_atomic_add v{VT}, v{VZ}, v{VONE}, s[92:93] sc0")
    if sig == "tick":
        A(f"s_cmp_lt_u32 s94, {NTILE - early}")
        A("s_cbranch_scc1 L_nosig")
        A(f"ds_write_b32 v{VZ}, v{VONE} offset:{FL}")
        A.label("L_nosig")
    A("s_mov_b64 exec, -1")
    body(32, "d")
    A(f"s_cmp_lt_u32 s94, {NTILE}")
    A("s_cbranch_scc1 L_dtop")
    stamp(2)
    if sig == "exit":
        A(f"ds_write_b32 v{VZ}, v{VONE} offset:{FL}")
    A(f"v_mov_b32 v{T0}, v{VL}")
    A("s_nop 1")
    A(f"v_permlane32_swap_b32 v{VL}, v{T0}")
    A(f"v_add_f32 v{VL}, v{VL}, v{T0}")
    A(f"v_mov_b32 v{T0}, v{VL}")
    A("s_nop 1")
    A(f"v_permlane16_swap_b32 v{VL}, v{T0}")
    A(f"v_add_f32 v{VL}, v{VL}, v{T0}")
    rowsum16(f"v{VL}")
    A(f"v_mul_f32 v{VL}, 0.5, v{VL}")
    for j in range(3):
        A(f"v_permlane32_swap_b32 v{ACC+2*j}, v{ACC+2*j+1}")
    for j in range(3):
        A(f"v_add_f32 v{ACC+2*j}, v{ACC+2*j}, v{ACC+2*j+1}")
    A(f"v_lshrrev_b32 v{T1}, 5, v2")
    A(f"v_lshl_add_u32 v{T0}, v{T1}, 2, v{VQ}")
    A("s_lshl_b32 s64, s3, 10")
    A(f"s_add_u32 s64, s64, {RC}")
    A(f"v_add_u32 v{T0}, s64, v{T0}")
    for j in range(3):
        A(f"ds_write_b32 v{T0}, v{ACC+2*j} offset:{8*j}")
    A(f"v_mov_b32 v{T1}, s64")
    A("s_mov_b64 exec, 1")
    A(f"ds_write_b32 v{T1}, v{VM} offset:768")
    A(f"ds_write_b32 v{T1}, v{VL} offset:772")
    A(f"ds_add_rtn_u32 v{T2}, v{VZ}, v{VONE} offset:{FL+4}")
    A("s_mov_b64 exec, -1")
    A(f"v_lshlrev_b32 v{T0}, 4, v2")
    A("s_lshl_b32 s64, s2, 10")
    A(f"s_add_u32 s64, s64, {W_REC}")
    A(f"v_add_u32 v{T3}, s64, v{T0}")
    srd(12, 38, 39, None, W_SIZE)
    A("s_waitcnt lgkmcnt(0)")
    A(f"v_readfirstlane_b32 s64, v{T2}")
    A("s_cmp_lg_u32 s64, 3")
    A("s_cbranch_scc1 L_sfin")
    for w in range(4):
        A(f"ds_read_b64 v[{48+2*w}:{49+2*w}], v{VZ} offset:{RC+1024*w+768}")
    A("s_mov_b32 exec_hi, 0x1ffff")
    for w in range(4):
        A(f"ds_read_b128 v[{32+4*w}:{35+4*w}], v{T0} offset:{RC+1024*w}")
    A("v_cmp_eq_u32 vcc, 48, v2")
    A("s_waitcnt lgkmcnt(4)")
    A("v_max3_f32 v56, v48, v50, v52")
    A("v_max_f32 v56, v56, v54")
    for w in range(4):
        A(f"v_sub_f32 v{57+w}, v{48+2*w}, v56")
    for w in range(4):
        A(f"v_mul_f32 v{57+w}, s69, v{57+w}")
    for w in range(4):
        A(f"v_exp_f32 v{57+w}, v{57+w}")
    A("s_waitcnt lgkmcnt(0)")
    for j in range(4):
        A(f"v_mul_f32 v{64+j}, v{32+j}, v57")
    for w in range(1, 4):
        for j in range(4):
            A(f"v_fmac_f32 v{64+j}, v{32+4*w+j}, v{57+w}")
    A("v_cndmask_b32 v64, v64, v56, vcc")
    A(f"buffer_store_dwordx4 v[64:67], v{T3}, s[12:15], 0 offen sc1")
    A("s_mov_b64 exec, 1")
    A(f"ds_write_b32 v{VZ}, v{VONE} offset:{FL+8}")
    A("s_mov_b64 exec, -1")
    A.label("L_sfin")
    if stamps:
        stamp(3)
        A("s_cmp_lg_u32 s3, 0")
        A("s_cbranch_scc1 L_end")
        A("s_lshl_b32 s64, s2, 7")
        A(f"s_add_u32 s64, s64, {W_ST0}")
        A("v_mov_b32 v3, s64")
        for n in range(3):
            A(f"v_mov_b32 v4, s{70+2*n}")
            A(f"v_mov_b32 v5, s{71+2*n}")
            A(f"global_store_dwordx2 v3, v[4:5], s[38:39] offset:{8*n}")
            A("s_nop 1")
    A("s_endpgm")

    A.label("L_helper")
    if prio:
        A("s_setprio 3")
    A("s_sub_u32 s3, s3, 4")
    A(f"v_mov_b32 v23, {W_EPOCH}")
    A("s_cmp_eq_u32 s3, 3")
    A("s_cbranch_scc1 L_g3")
    EP = 60
    A("v_lshrrev_b32 v3, 3, v2")
    A("v_and_b32 v4, 7, v2")
    A("v_mul_u32_u24 v5, 12288, v3")
    A("v_lshl_add_u32 v5, v4, 4, v5")
    A("v_lshlrev_b32 v6, 4, v2")
    A("v_lshlrev_b32 v7, 2, v2")
    A("s_mul_i32 s62, s60, 384")
    A("s_lshl_b32 s63, s3, 7")
    A("s_add_u32 s62, s62, s63")
    A("s_mul_i32 s63, s61, %d" % (80 * 12288))
    A("s_sub_u32 s65, %d, s62" % (640 * 12288))
    A("s_waitcnt lgkmcnt(0)")
    srd(8, 16, 17, None, 1280)
    A("buffer_load_dwordx4 v[16:19], v6, s[8:11], 0 offen")
    A("buffer_load_dword v20, v7, s[8:11], 0 offen offset:1024")
    srd(12, 22, 23, "s62", "s65")
    WQ = 64
    for i in range(10):
        A(f"buffer_load_dwordx4 v[{WQ+4*i}:{WQ+4*i+3}], v5, s[12:15], s63 offen nt")
        if i < 9:
            A("s_add_u32 s63, s63, %d" % (8 * 12288))
    srd(4, 38, 39, None, W_SIZE)
    A(f"buffer_load_dword v{EP}, v23, s[4:7], 0 offen sc1")
    A("s_barrier")

    def ln_sums(F, a, b):
        A(f"v_add_f32 {a}, v{F}, v{F+1}")
        A(f"v_mul_f32 {b}, v{F}, v{F}")
        A(f"v_fmac_f32 {b}, v{F+1}, v{F+1}")
        for i in range(2, 10):
            A(f"v_add_f32 {a}, {a}, v{F+i}")
            A(f"v_fmac_f32 {b}, v{F+i}, v{F+i}")
        A("s_nop 1")
        A(f"v_permlane32_swap_b32 {a}, {b}")
        A(f"v_add_f32 {a}, {a}, {b}")
        A(f"v_mov_b32 {b}, {a}")
        A("s_nop 1")
        A(f"v_permlane16_swap_b32 {a}, {b}")
        A(f"v_add_f32 {a}, {a}, {b}")
        rowsum16(a)
        A(f"v_mov_b32 {b}, {a}")
        A("s_nop 1")
        A(f"v_permlane32_swap_b32 {a}, {b}")

    pstamp(3)
    A("s_waitcnt vmcnt(11)")
    pstamp(4)
    F = 21
    for i in range(5):
        A(f"v_lshlrev_b32 v{F+2*i}, 16, v{16+i}")
        A(f"v_and_b32 v{F+2*i+1}, 0xffff0000, v{16+i}")
    ln_sums(F, "v12", "v13")
    A(f"v_mul_f32 v12, {f32(1/640)}, v12")
    A(f"v_mul_f32 v13, {f32(1/640)}, v13")
    A("v_fma_f32 v13, -v12, v12, v13")
    bf16r("v12", "v12")
    bf16r("v13", "v13")
    A(f"v_add_f32 v13, {f32(1e-5)}, v13")
    bf16r("v13", "v13")
    A("v_sqrt_f32 v13, v13")
    A("s_nop 0")
    bf16r("v13", "v13")
    A("v_rcp_f32 v13, v13")
    for i in range(5):
        A(f"v_sub_f32 v{F+2*i}, v{F+2*i}, v12")
        A(f"v_sub_f32 v{F+2*i+1}, v{F+2*i+1}, v12")
        A(f"v_cvt_pk_bf16_f32 v{16+i}, v{F+2*i}, v{F+2*i+1}")
    for i in range(5):
        A(f"v_lshlrev_b32 v{F+2*i}, 16, v{16+i}")
        A(f"v_and_b32 v{F+2*i+1}, 0xffff0000, v{16+i}")
    for i in range(5):
        A(f"v_mul_f32 v{F+2*i}, v{F+2*i}, v13")
        A(f"v_mul_f32 v{F+2*i+1}, v{F+2*i+1}, v13")
        A(f"v_cvt_pk_bf16_f32 v{16+i}, v{F+2*i}, v{F+2*i+1}")
    for i in range(5):
        A(f"v_and_b32 v{32+4*i}, 0xffff, v{16+i}")
        A(f"v_lshlrev_b32 v{33+4*i}, 16, v{16+i}")
        A(f"v_lshrrev_b32 v{34+4*i}, 16, v{16+i}")
        A(f"v_and_b32 v{35+4*i}, 0xffff0000, v{16+i}")
    A("v_lshlrev_b32 v12, 6, v2")
    for i in range(4):
        A(f"ds_write_b128 v12, v[{32+4*i}:{35+4*i}] offset:{XF+16*i}")
    A(f"ds_write_b128 v6, v[48:51] offset:{XF+4096}")
    A("s_mul_i32 s64, s61, 640")
    A("v_lshlrev_b32 v12, 3, v3")
    A("v_add_u32 v12, s64, v12")
    for i in range(10):
        A(f"ds_read_b64 v[{32+2*i}:{33+2*i}], v12 offset:{XF+64*i}")
    for j in range(8):
        A(f"v_mov_b32 v{52+j}, 0")
    pstamp(5)
    for i in range(10):
        A(f"s_waitcnt vmcnt({10 - i}) lgkmcnt({0 if (stamps and pst) else 9-i})")
        for j in range(4):
            A(f"v_dot2c_f32_bf16 v{52+2*j}, v{WQ+4*i+j}, v{32+2*i}")
            A(f"v_dot2c_f32_bf16 v{53+2*j}, v{WQ+4*i+j}, v{33+2*i}")
    pstamp(6)
    A("v_bfe_u32 v12, v2, 5, 1")
    A("v_bfe_u32 v13, v2, 4, 1")
    A("v_lshl_add_u32 v12, v13, 1, v12")
    A("v_bfe_u32 v13, v2, 3, 1")
    for j in range(4):
        A(f"v_permlane32_swap_b32 v{52+2*j}, v{53+2*j}")
    A("v_lshl_add_u32 v12, v13, 2, v12")
    A("v_lshl_add_u32 v12, v4, 3, v12")
    for j in range(4):
        A(f"v_add_f32 v{52+2*j}, v{52+2*j}, v{53+2*j}")
    A("s_lshl_b32 s64, s2, 11")
    A("s_lshl_b32 s63, s3, 9")
    A("v_permlane16_swap_b32 v52, v54")
    A("v_permlane16_swap_b32 v56, v58")
    A("s_add_u32 s64, s64, s63")
    A(f"s_add_u32 s64, s64, {W_QX}")
    A("v_add_f32 v52, v52, v54")
    A("v_add_f32 v56, v56, v58")
    A("v_lshlrev_b32 v12, 3, v12")
    A("v_add_u32 v12, s64, v12")
    dpp_add("v14", "v52", "row_ror:8", "0x3")
    A("s_nop 1")
    dpp_add("v14", "v56", "row_ror:8", "0xc")
    A("s_waitcnt vmcnt(0)")
    A(f"v_add_u32 v15, 1, v{EP}")
    A("buffer_store_dwordx2 v[14:15], v12, s[4:7], 0 offen sc1")
    pstamp(7)
    A("s_branch L_gather")

    def role_sgprs():
        A("s_add_u32 s40, s60, s61")
        A("s_and_b32 s40, s40, 7")
        A("s_mov_b32 s41, 0")
        A("s_add_u32 s48, s60, 28")
        A("s_cmp_lt_u32 s60, 12")
        A("s_cselect_b32 s41, 3, s41")
        A("s_add_u32 s43, s60, 16")
        A("s_cmp_lt_u32 s60, 4")
        A("s_cselect_b32 s41, 2, s41")
        A("s_cselect_b32 s48, s43, s48")
        A("s_lshl_b32 s43, s60, 1")
        A("s_add_u32 s43, s43, s40")
        A("s_sub_u32 s43, s43, 48")
        A("s_cmp_ge_u32 s60, 24")
        A("s_cselect_b32 s41, 2, s41")
        A("s_cselect_b32 s48, s43, s48")
        A("s_cselect_b32 s42, 2, 1")
        A("s_cselect_b32 s43, s43, s60")
        A("s_cmp_eq_u32 s40, 0")
        A("s_cselect_b32 s41, s42, s41")
        A("s_cselect_b32 s48, s43, s48")
        A("s_cmp_eq_u32 s40, 2")
        A("s_cselect_b32 s41, 3, s41")
        A("s_cselect_b32 s48, s60, s48")
        A("s_sub_u32 s43, s40, 3")
        A("s_cmp_ge_u32 s40, 3")
        A("s_cselect_b32 s41, 4, s41")
        A("s_cselect_b32 s48, s43, s48")

    V_H1, V_B = 4, 5
    R0, R1, R2, R3, R4 = 6, 7, 8, 9, 10
    A.label("L_g3")
    role_sgprs()
    A("v_lshrrev_b32 v12, 3, v2")
    A("v_lshlrev_b32 v12, 11, v12")
    A("v_and_b32 v13, 7, v2")
    A("v_lshl_add_u32 v12, v13, 3, v12")
    A("s_lshl_b32 s42, s48, 14")
    A("s_lshl_b32 s43, s60, 6")
    A("s_add_u32 s42, s42, s43")
    A(f"s_add_u32 s42, s42, {W_PT}")
    A(f"v_add_u32 v{V_B}, s42, v12")
    A("s_lshl_b32 s42, s2, 10")
    A(f"s_add_u32 s42, s42, {W_REC}")
    A("v_lshlrev_b32 v16, 4, v2")
    A("v_add_u32 v16, s42, v16")
    A("v_and_b32 v14, 1, v2")
    A("v_lshlrev_b32 v14, 3, v14")
    A("v_bfe_u32 v15, v2, 3, 1")
    A("v_add_u32 v14, v14, v15")
    A("v_bfe_u32 v15, v2, 4, 2")
    A("v_lshl_add_u32 v18, v15, 1, v14")
    A("v_bfe_u32 v17, v2, 1, 2")
    A(f"v_mul_u32_u24 v17, {H_STR}, v17")
    A("s_lshl_b32 s42, s48, 6")
    A(f"s_add_u32 s43, s42, {W_H}")
    A("v_add_u32 v17, s43, v17")
    A(f"v_lshl_add_u32 v{R2}, v18, 2, v17")
    A(f"v_add_u32 v{R3}, {4*H_STR}, v{R2}")
    A(f"v_lshlrev_b32 v{R4}, 5, v2")
    A("s_lshl_b32 s42, s48, 11")
    A(f"s_add_u32 s42, s42, {W_PT}")
    A(f"v_add_u32 v{R4}, s42, v{R4}")
    A("v_lshlrev_b32 v18, 1, v18")
    A("v_and_b32 v14, 1, v2")
    A(f"v_mul_u32_u24 v14, {HP_STR}, v14")
    A("v_lshrrev_b32 v15, 1, v2")
    A("v_lshl_add_u32 v14, v15, 2, v14")
    A("s_lshl_b32 s42, s48, 7")
    A(f"s_add_u32 s42, s42, {W_HP}")
    A("v_add_u32 v20, s42, v14")
    A("s_lshl_b32 s64, s60, 8")
    A(f"s_add_u32 s64, s64, {W_TK}")
    A("v_mov_b32 v21, s64")
    A("v_mov_b32 v22, 0")
    A(f"v_mov_b32 v{R0}, 0")
    A(f"v_mov_b32 v{R1}, 0")
    for i in range(4):
        A(f"v_mov_b32 v{24+i}, 0")
    A(f"ds_write_b128 v22, v[24:27] offset:{FL}")
    for i in range(4):
        A(f"v_mov_b32 v{12+i}, -1")
    A("s_waitcnt lgkmcnt(0)")
    srd(4, 38, 39, None, W_SIZE)
    A(f"buffer_load_dword v{EP}, v23, s[4:7], 0 offen sc1")
    A("buffer_store_dwordx4 v[12:15], v16, s[4:7], 0 offen sc1")
    A("s_cmp_lg_u32 s61, 0")
    A("s_cbranch_scc1 L_notk")
    A("s_mov_b64 exec, 1")
    A("buffer_store_dword v22, v21, s[4:7], 0 offen sc1")
    A("s_mov_b64 exec, -1")
    A.label("L_notk")
    A("s_cmp_eq_u32 s41, 4")
    A("s_cbranch_scc0 L_clr_nsb")
    A(f"buffer_store_dwordx2 v[12:13], v{V_B}, s[4:7], 0 offen sc1")
    A("s_branch L_clr_done")
    A.label("L_clr_nsb")
    A("s_cmp_eq_u32 s41, 1")
    A("s_cbranch_scc1 L_clr_gu")
    A("s_cmp_eq_u32 s41, 3")
    A("s_cbranch_scc0 L_clr_done")
    A(f"buffer_store_dword v12, v{R2}, s[4:7], 0 offen sc1")
    A(f"buffer_store_dword v12, v{R3}, s[4:7], 0 offen sc1")
    srd(8, 16, 17, None, 1280)
    A("s_lshl_b32 s42, s48, 5")
    A(f"buffer_load_ushort v{R0}, v18, s[8:11], s42 offen")
    A("s_branch L_clr_done")
    A.label("L_clr_gu")
    A(f"v_mov_b32 v{R0}, v20")
    A(f"s_mov_b32 s42, {2*HP_STR}")
    A(f"buffer_store_dword v12, v{R0}, s[4:7], 0 offen sc1")
    A(f"buffer_store_dword v12, v{R0}, s[4:7], s42 offen sc1")
    A.label("L_clr_done")
    A("s_barrier")
    A("s_lshl_b32 s64, s2, 11")
    A(f"s_add_u32 s64, s64, {W_QX + 1536}")
    A("v_mov_b32 v12, s64")
    A("s_waitcnt vmcnt(0)")
    A(f"v_add_u32 v15, 1, v{EP}")
    A("v_mov_b32 v14, 0")
    A("s_mov_b64 exec, 1")
    A("buffer_store_dwordx2 v[14:15], v12, s[4:7], 0 offen sc1")
    A("s_mov_b64 exec, -1")
    A.label("L_gather")
    A("s_lshl_b32 s62, s3, 1")
    A("s_lshl_b32 s63, s60, 3")
    A("s_add_u32 s63, s63, s62")
    A("s_lshl_b32 s63, s63, 11")
    A(f"s_add_u32 s63, s63, {W_QX}")
    A("s_mul_i32 s64, s62, 768")
    A(f"s_add_u32 s64, s64, {QP}")
    A("v_lshlrev_b32 v32, 4, v2")
    A("v_add_u32 v32, s63, v32")
    A("v_cmp_gt_u32 vcc, 32, v2")
    A("v_add_u32 v33, 1024, v32")
    A(f"v_add_u32 v34, {2048 - 512}, v32")
    A("v_cndmask_b32 v33, v34, v33, vcc")
    A(f"v_add_u32 v34, {2048 + 512}, v32")
    A("v_lshlrev_b32 v35, 3, v2")
    A("v_add_u32 v35, s64, v35")
    A("v_add_u32 v36, 512, v35")
    A(f"v_add_u32 v37, {768 - 256}, v35")
    A("v_cndmask_b32 v36, v37, v36, vcc")
    A(f"v_add_u32 v37, {768 + 256}, v35")
    A("v_lshrrev_b32 v38, 5, v2")
    A("v_lshlrev_b32 v38, 11, v38")
    A(f"s_add_u32 s64, s63, 1540")
    A("v_add_u32 v38, s64, v38")
    A(f"v_add_u32 v15, 1, v{EP}")
    A(f"s_mov_b32 s58, {SPIN}")
    A.label("L_qx")
    for i in range(3):
        A(f"buffer_load_dwordx4 v[{40+4*i}:{43+4*i}], v{32+i}, s[4:7], 0 offen sc1")
    A("buffer_load_dword v39, v38, s[4:7], 0 offen sc1")
    A("s_waitcnt vmcnt(0)")
    A("v_xor_b32 v52, v41, v15")
    A("v_xor_b32 v53, v43, v15")
    A("v_xor_b32 v54, v45, v15")
    A("v_xor_b32 v55, v47, v15")
    A("v_xor_b32 v56, v49, v15")
    A("v_xor_b32 v57, v51, v15")
    A("v_xor_b32 v58, v39, v15")
    A("v_or3_b32 v52, v52, v53, v54")
    A("v_or3_b32 v55, v55, v56, v57")
    A("v_or3_b32 v52, v52, v55, v58")
    A("v_cmp_ne_u32 vcc, 0, v52")
    A("s_cbranch_vccz L_qx_ok")
    A("s_sub_u32 s58, s58, 1")
    A("s_cbranch_scc0 L_qx")
    A.label("L_qx_ok")
    for i in range(3):
        A(f"ds_write2_b32 v{35+i}, v{40+4*i}, v{42+4*i} offset0:0 offset1:1")
    A("v_readfirstlane_b32 s59, v15")
    A("s_waitcnt lgkmcnt(0)")
    pstamp(8)
    A("s_barrier")
    if prio:
        A("s_setprio 0")
    stamp(1)

    A("v_mov_b32 v11, 0")
    A("s_mov_b32 s56, 0x05040100")
    A("s_mov_b32 s57, 0x07060302")
    A(f"s_mov_b32 s69, {LOG2E:#x}")
    A("s_cmp_eq_u32 s3, 3")
    A("s_cbranch_scc1 L_pub")
    role_sgprs()
    for r in (V_B, R0, R1, R2, R3, R4):
        A(f"v_mov_b32 v{r}, 0")
    A("s_branch L_disp")
    A.label("L_pub")
    A("s_cmp_lg_u32 s61, 0")
    A("s_cbranch_scc1 L_disp")
    A("v_mov_b32 v13, 1")
    A("s_mov_b64 exec, 1")
    A("global_atomic_add v11, v13, s[36:37]")
    A("s_mov_b64 exec, -1")
    A.label("L_disp")
    A("s_cmp_eq_u32 s41, 4")
    A("s_cbranch_scc1 L_sb")
    A("s_cmp_eq_u32 s41, 1")
    A("s_cbranch_scc1 L_gu")
    A("s_cmp_eq_u32 s41, 2")
    A("s_cbranch_scc1 L_dn")
    A("s_cmp_eq_u32 s41, 3")
    A("s_cbranch_scc0 L_fin")
    A("s_cmp_lg_u32 s3, 3")
    A("s_cbranch_scc1 L_fin")

    A(f"v_lshlrev_b32 v{R0}, 16, v{R0}")
    handshake("L_hs_red")
    stamp(2)
    lds_wait("L_pw_red", 8, 2)
    if prio:
        A("s_setprio 3")
    stamp(3)
    A(f"s_mov_b32 s58, {SPIN}")
    A.label("L_h2")
    A(f"buffer_load_dwordx4 v[16:19], v{R4}, s[4:7], 0 offen sc1")
    A(f"buffer_load_dwordx4 v[20:23], v{R4}, s[4:7], 0 offen offset:16 sc1")
    A("s_waitcnt vmcnt(0)")
    maxchain("v14", range(16, 24))
    poll_end("L_h2", "v14", psleep)
    stamp(7)
    for j in range(4):
        A(f"v_permlane32_swap_b32 v{16+j}, v{20+j}")
    for j in range(4):
        A(f"v_add_f32 v{16+j}, v{16+j}, v{20+j}")
    A("s_nop 0")
    A("v_permlane16_swap_b32 v16, v18")
    A("v_permlane16_swap_b32 v17, v19")
    A("v_add_f32 v16, v16, v18")
    A("v_add_f32 v17, v17, v19")
    A("s_nop 0")
    dpp_add("v18", "v16", "row_ror:8", "0x3")
    A("s_nop 1")
    dpp_add("v18", "v17", "row_ror:8", "0xc")
    A("s_nop 1")
    dpp_add("v19", "v18", "row_shl:4", "0x5")
    A("s_nop 1")
    dpp_add("v19", "v18", "row_shr:4", "0xa")
    A("s_nop 1")
    dpp_add("v19", "v19", "quad_perm:[2,3,0,1]")
    bf16r("v19", "v19")
    A(f"v_add_f32 v19, v19, v{R0}")
    bf16r("v19", "v19")
    A(f"buffer_store_dword v19, v{R2}, s[4:7], 0 offen sc1")
    A(f"buffer_store_dword v19, v{R3}, s[4:7], 0 offen sc1")
    stamp(8)
    A("s_branch L_fin")

    A.label("L_sb")
    WO_SP, WO_RAW = 207, 208
    A("v_and_b32 v12, 15, v2")
    A("v_lshrrev_b32 v13, 4, v2")
    A("v_mul_u32_u24 v13, 12, v13")
    A("s_mul_i32 s42, s3, 48")
    A("v_add3_u32 v13, v13, v12, s42")
    A("v_min_u32 v14, 13, v12")
    A("v_add_u32 v14, 180, v14")
    A("v_cmp_gt_u32 vcc, 12, v12")
    A("s_nop 1")
    A("v_cndmask_b32 v13, v14, v13, vcc")
    A(f"v_lshlrev_b32 v{V_H1}, 2, v13")
    A("s_mul_i32 s42, s60, 192")
    A("s_mul_i32 s43, s3, 48")
    A("s_add_u32 s42, s42, s43")
    A("s_mul_i32 s42, s42, 1280")
    A("s_lshl_b32 s43, s48, 8")
    A("s_add_u32 s42, s42, s43")
    A("s_sub_u32 s43, %d, s42" % (6144 * 1280))
    srd(8, 24, 25, "s42", "s43")
    A("v_lshlrev_b32 v16, 2, v2")
    A("s_lshl_b32 s42, s60, 13")
    A(f"s_add_u32 s62, s42, {W_REC}")
    A("s_add_u32 s63, s62, 4096")
    if not woe:
        lds_wait("L_tw_sb", 0, tsleep)
    stamp(2)
    if not nopf:
        for r in range(48):
            if r % 3 == 0:
                A(f"s_mov_b32 s42, {(r//3)*3840}")
            A(f"buffer_load_dword v{WO_RAW+r}, v16, s[8:11], s42 offen offset:{(r%3)*1280} nt")
    wo_units = [([WO_RAW + 2 * p], [WO_RAW + 2 * p + 1]) for p in range(24)]
    WO_P, _ = pair_perm(wo_units, WO_SP, [46 - 2 * p for p in range(24)])
    stamp(3)
    lds_wait("L_pw_sb", 8, 1)
    if prio:
        A("s_setprio 3")
    stamp(4)
    A(f"s_mov_b32 s58, {SPIN}")
    A.label("L_h1")
    for i in range(8):
        so = "s62" if i < 4 else "s63"
        A(f"buffer_load_dword v{16+i}, v{V_H1}, s[4:7], {so} offen offset:{(i%4)*1024} sc1")
    A("s_waitcnt vmcnt(0)")
    maxchain("v12", range(16, 24))
    poll_end("L_h1", "v12", h1sleep)
    stamp(5)
    A("v_max3_f32 v12, v16, v17, v18")
    A("v_max3_f32 v13, v19, v20, v21")
    A("v_max3_f32 v12, v12, v22, v23")
    A("v_max_f32 v12, v12, v13")
    A("s_nop 1")
    A("v_mov_b32_dpp v12, v12 row_newbcast:12 row_mask:0xf bank_mask:0xf")
    A("s_nop 1")
    for i in range(8):
        A(f"v_sub_f32_dpp v{24+i}, v{16+i}, v12 row_newbcast:12 row_mask:0xf bank_mask:0xf")
    for i in range(8):
        A(f"v_mul_f32 v{24+i}, s69, v{24+i}")
    for i in range(8):
        A(f"v_exp_f32 v{24+i}, v{24+i}")
    A("s_nop 0")
    A("v_mul_f32 v13, v16, v24")
    A("v_mul_f32 v14, v20, v28")
    for i in range(1, 4):
        A(f"v_fmac_f32 v13, v{16+i}, v{24+i}")
        A(f"v_fmac_f32 v14, v{20+i}, v{28+i}")
    A("v_add_f32 v13, v13, v14")
    A("s_nop 1")
    A("v_mov_b32_dpp v14, v13 row_newbcast:13 row_mask:0xf bank_mask:0xf")
    A("v_rcp_f32 v14, v14")
    A("s_nop 0")
    A("v_mul_f32 v13, v13, v14")
    A("s_nop 1")
    A("v_mov_b32_dpp v14, v13 quad_perm:[1,0,3,2] row_mask:0xf bank_mask:0xf")
    A("v_cvt_pk_bf16_f32 v13, v13, v14")
    A("s_nop 0")

    def psg(p):
        return 16 + p if p < 16 else 8 + (p - 16)

    for p in range(24):
        lane = (p // 6) * 16 + 2 * (p % 6)
        A(f"v_readlane_b32 s{psg(p)}, v13, {lane}")
    A("v_mov_b32 v14, 0")
    A("v_mov_b32 v15, 0")
    A("v_mov_b32 v16, 0")
    A("v_mov_b32 v17, 0")
    for p in range(24):
        a = 14 + 2 * (p % 2)
        A(f"v_dot2c_f32_bf16 v{a}, s{psg(p)}, v{WO_P[p][0]}")
        A(f"v_dot2c_f32_bf16 v{a+1}, s{psg(p)}, v{WO_P[p][1]}")
    A("v_lshlrev_b32 v12, 3, v2")
    A("s_lshl_b32 s42, s3, 9")
    A("v_add_u32 v13, s42, v12")
    A("s_nop 0")
    A("v_add_f32 v14, v14, v16")
    A("v_add_f32 v15, v15, v17")
    A(f"ds_write_b64 v13, v[14:15] offset:{AP}")
    A("s_waitcnt lgkmcnt(0)")
    A("s_barrier")
    A("s_cmp_lg_u32 s3, 3")
    A("s_cbranch_scc1 L_fin")
    for w in range(4):
        A(f"ds_read_b64 v[{16+2*w}:{17+2*w}], v12 offset:{AP+512*w}")
    A("s_waitcnt lgkmcnt(0)")
    A("v_add_f32 v16, v16, v18")
    A("v_add_f32 v17, v17, v19")
    A("v_add_f32 v20, v20, v22")
    A("v_add_f32 v21, v21, v23")
    A("v_add_f32 v16, v16, v20")
    A("v_add_f32 v17, v17, v21")
    A(f"buffer_store_dwordx2 v[16:17], v{V_B}, s[4:7], 0 offen sc1")
    stamp(6)
    A("s_branch L_fin")

    A.label("L_gu")
    A("s_lshl_b32 s42, s48, 2")
    A("s_add_u32 s42, s42, s3")
    A("s_and_b32 s42, s42, 7")
    A(f"s_mul_i32 s42, s42, {H_STR}")
    A(f"s_add_u32 s42, s42, {W_H}")
    A("v_lshlrev_b32 v14, 5, v2")
    A(f"v_add_u32 v{R1}, s42, v14")
    A("v_lshlrev_b32 v14, 3, v2")
    A(f"v_add_u32 v{R2}, s42, v14")
    A("v_and_b32 v14, 7, v2")
    A("v_lshlrev_b32 v14, 3, v14")
    A("v_bfe_u32 v15, v2, 5, 1")
    A("v_lshl_add_u32 v14, v15, 2, v14")
    A("v_bfe_u32 v15, v2, 4, 1")
    A("v_lshl_add_u32 v14, v15, 1, v14")
    A("v_bfe_u32 v15, v2, 3, 1")
    A("v_add_u32 v14, v14, v15")
    A("s_lshl_b32 s42, s3, 9")
    A(f"s_add_u32 s42, s42, {GP}")
    A("v_lshlrev_b32 v14, 3, v14")
    A(f"v_add_u32 v{R3}, s42, v14")
    A("v_lshrrev_b32 v14, 3, v2")
    A("s_mul_i32 s42, s3, 80")
    A("v_add_u32 v14, s42, v14")
    A("v_lshlrev_b32 v14, 2, v14")
    A(f"v_add_u32 v{R4}, {HN}, v14")
    GU_SP, GU_RAW = 45, 46
    A("s_lshl_b32 s42, s48, 7")
    A("s_mul_i32 s43, s3, %d" % (160 * 3072))
    A("s_add_u32 s42, s42, s43")
    A("s_sub_u32 s43, %d, s42" % (640 * 3072))
    srd(8, 28, 29, "s42", "s43")
    srd(12, 30, 31, "s42", "s43")
    A("v_lshrrev_b32 v16, 3, v2")
    A("v_mul_u32_u24 v16, 6144, v16")
    A("v_and_b32 v13, 7, v2")
    A("v_lshl_add_u32 v16, v13, 4, v16")
    gu_all = [(m, ip) for m in range(2) for ip in range(10)]

    def gu_loads(lst):
        units = []
        for (m, ip) in lst:
            sr = 8 if m == 0 else 12
            r = GU_RAW + 80 * m + 8 * ip
            A(f"s_mov_b32 s42, {ip*49152}")
            if not nopf:
                A(f"buffer_load_dwordx4 v[{r}:{r+3}], v16, s[{sr}:{sr+3}], s42 offen nt")
                A(f"buffer_load_dwordx4 v[{r+4}:{r+7}], v16, s[{sr}:{sr+3}], s42 offen offset:3072 nt")
            units.append(([r + i for i in range(4)], [r + 4 + i for i in range(4)]))
        return units

    u1 = gu_loads(gu_all[:gue])
    n = len(u1)
    GU_P1, sp = pair_perm(u1, GU_SP, [2 * (n - 1 - k) for k in range(n)])
    handshake("L_hs_gu")
    if gue < 20:
        lds_wait("L_tw_gu", 0, tsleep)
    stamp(2)
    u2 = gu_loads(gu_all[gue:])
    n = len(u2)
    GU_P2, sp = pair_perm(u2, sp, [2 * (n - 1 - k) for k in range(n)])
    GU_P = GU_P1 + GU_P2
    stamp(3)
    lds_wait("L_pw_gu", 8, 2)
    if prio:
        A("s_setprio 3")
    stamp(4)
    A(f"s_mov_b32 s58, {SPIN}")
    A.label("L_h3")
    A(f"buffer_load_dwordx4 v[22:25], v{R1}, s[4:7], 0 offen sc1")
    A(f"buffer_load_dwordx4 v[26:29], v{R1}, s[4:7], 0 offen offset:16 sc1")
    A(f"buffer_load_dwordx2 v[30:31], v{R2}, s[4:7], 0 offen offset:2048 sc1")
    A("s_waitcnt vmcnt(0)")
    maxchain("v14", range(22, 32))
    poll_end("L_h3", "v14", psleep)
    stamp(7)
    F2 = 22
    ln_sums(F2, "v12", "v13")
    A(f"v_mul_f32 v12, {f32(1/640)}, v12")
    A(f"v_mul_f32 v13, {f32(1/640)}, v13")
    A("v_fma_f32 v13, -v12, v12, v13")
    A(f"v_add_f32 v13, {f32(1e-5)}, v13")
    A("v_rsq_f32 v13, v13")
    A("s_nop 0")
    A("v_mul_f32 v12, v12, v13")
    for i in range(5):
        A(f"v_fma_f32 v{F2+2*i}, v{F2+2*i}, v13, -v12")
        A(f"v_fma_f32 v{F2+2*i+1}, v{F2+2*i+1}, v13, -v12")
        A(f"v_cvt_pk_bf16_f32 v{16+i}, v{F2+2*i}, v{F2+2*i+1}")
    A("v_lshlrev_b32 v12, 4, v2")
    A("v_lshlrev_b32 v13, 2, v2")
    A(f"ds_write_b128 v12, v[16:19] offset:{HN}")
    A(f"ds_write_b32 v13, v20 offset:{HN+1024}")
    HNP = 224
    for k in range(5):
        A(f"ds_read2_b32 v[{HNP+2*k}:{HNP+2*k+1}], v{R4} offset0:{16*k} offset1:{16*k+8}")
    GA = 208
    for c in range(16):
        A(f"v_mov_b32 v{GA+c}, 0")
    for ip in range(10):
        if ip % 2 == 0:
            A(f"s_waitcnt lgkmcnt({4 - ip//2})")
        for m in range(2):
            for c in range(8):
                A(f"v_dot2c_f32_bf16 v{GA+8*m+c}, v{HNP+ip}, v{GU_P[10*m+ip][c]}")
    A("s_nop 2")
    for m in range(2):
        for c in range(4):
            A(f"v_permlane32_swap_b32 v{GA+8*m+c}, v{GA+8*m+c+4}")
    for m in range(2):
        for c in range(4):
            A(f"v_add_f32 v{GA+8*m+c}, v{GA+8*m+c}, v{GA+8*m+c+4}")
    for m in range(2):
        for c in range(2):
            A(f"v_permlane16_swap_b32 v{GA+8*m+c}, v{GA+8*m+c+2}")
    for m in range(2):
        for c in range(2):
            A(f"v_add_f32 v{GA+8*m+c}, v{GA+8*m+c}, v{GA+8*m+c+2}")
    A("s_nop 0")
    dpp_add("v16", f"v{GA}", "row_ror:8", "0x3")
    dpp_add("v17", f"v{GA+8}", "row_ror:8", "0x3")
    A("s_nop 0")
    dpp_add("v16", f"v{GA+1}", "row_ror:8", "0xc")
    dpp_add("v17", f"v{GA+9}", "row_ror:8", "0xc")
    A(f"ds_write_b64 v{R3}, v[16:17]")
    A("s_waitcnt lgkmcnt(0)")
    A("s_barrier")
    A("s_cmp_lg_u32 s3, 3")
    A("s_cbranch_scc1 L_fin")
    A("v_lshlrev_b32 v12, 3, v2")
    for w in range(4):
        A(f"ds_read_b64 v[{16+2*w}:{17+2*w}], v12 offset:{GP+512*w}")
    A(f"s_mov_b32 s42, {2*HP_STR}")
    A("s_waitcnt lgkmcnt(0)")
    A("v_add_f32 v16, v16, v18")
    A("v_add_f32 v20, v20, v22")
    A("v_add_f32 v17, v17, v19")
    A("v_add_f32 v21, v21, v23")
    A("v_add_f32 v16, v16, v20")
    A("v_add_f32 v17, v17, v21")
    bf16r("v16", "v16")
    A("v_mul_f32 v18, 0xbfb8aa3b, v16")
    A("v_exp_f32 v18, v18")
    bf16r("v17", "v17")
    A("v_add_f32 v18, 1.0, v18")
    A("v_rcp_f32 v18, v18")
    A("s_nop 0")
    bf16r("v18", "v18")
    A("v_mul_f32 v18, v18, v17")
    A("s_nop 1")
    A("v_mov_b32_dpp v19, v18 quad_perm:[1,0,3,2] row_mask:0xf bank_mask:0xf")
    A("v_cvt_pk_bf16_f32 v18, v18, v19")
    A("s_nop 1")
    A("v_mov_b32_dpp v19, v18 quad_perm:[0,0,2,2] row_mask:0xf bank_mask:0xf")
    A(f"buffer_store_dword v19, v{R0}, s[4:7], 0 offen sc1")
    A(f"buffer_store_dword v19, v{R0}, s[4:7], s42 offen sc1")
    stamp(8)
    A("s_branch L_fin")

    A.label("L_dn")
    A("s_and_b32 s42, s48, 3")
    A(f"s_mul_i32 s42, s42, {HP_STR}")
    A("s_mul_i32 s43, s3, 768")
    A("s_add_u32 s42, s42, s43")
    A(f"s_add_u32 s42, s42, {W_HP}")
    A("v_lshrrev_b32 v14, 2, v2")
    A("v_mul_u32_u24 v14, 48, v14")
    A(f"v_add_u32 v{R0}, s42, v14")
    A("v_and_b32 v14, 3, v2")
    A("v_lshlrev_b32 v14, 3, v14")
    A("v_bfe_u32 v15, v2, 5, 1")
    A("v_lshl_add_u32 v14, v15, 2, v14")
    A("v_bfe_u32 v15, v2, 4, 1")
    A("v_lshl_add_u32 v14, v15, 1, v14")
    A("v_bfe_u32 v15, v2, 3, 1")
    A("v_add_u32 v14, v14, v15")
    A("s_lshl_b32 s42, s3, 7")
    A(f"s_add_u32 s42, s42, {GP}")
    A("v_lshlrev_b32 v14, 2, v14")
    A(f"v_add_u32 v{R1}, s42, v14")
    A("s_and_b32 s42, s48, 7")
    A(f"s_mul_i32 s42, s42, {H_STR}")
    A("s_lshl_b32 s43, s48, 7")
    A("s_add_u32 s42, s42, s43")
    A(f"s_add_u32 s42, s42, {W_H}")
    A("v_and_b32 v14, 31, v2")
    A("v_lshlrev_b32 v14, 2, v14")
    A(f"v_add_u32 v{R2}, s42, v14")
    DN_SP, DN_RAW = 47, 48
    A("s_lshl_b32 s42, s48, 6")
    A("s_mul_i32 s43, s3, %d" % (384 * 1280))
    A("s_add_u32 s42, s42, s43")
    A("s_sub_u32 s43, %d, s42" % (1536 * 1280))
    srd(8, 32, 33, "s42", "s43")
    A("v_lshrrev_b32 v16, 2, v2")
    A("v_mul_u32_u24 v16, %d, v16" % (24 * 1280))
    A("v_and_b32 v13, 3, v2")
    A("v_lshl_add_u32 v16, v13, 4, v16")

    def dn_loads(ips):
        units = []
        for ip in ips:
            r = DN_RAW + 8 * ip
            A(f"s_mov_b32 s42, {ip*2560}")
            if not nopf:
                A(f"buffer_load_dwordx4 v[{r}:{r+3}], v16, s[8:11], s42 offen nt")
                A(f"buffer_load_dwordx4 v[{r+4}:{r+7}], v16, s[8:11], s42 offen offset:1280 nt")
            units.append(([r + i for i in range(4)], [r + 4 + i for i in range(4)]))
        return units

    u1 = dn_loads(range(dne))
    n = len(u1)
    DN_P1, sp = pair_perm(u1, DN_SP, [2 * (n - 1 - k) for k in range(n)])
    handshake("L_hs_dn")
    if dne < 12:
        lds_wait("L_tw_dn", 0, tsleep)
    stamp(2)
    u2 = dn_loads(range(dne, 12))
    n = len(u2)
    DN_P2, sp = pair_perm(u2, sp, [2 * (n - 1 - k) for k in range(n)])
    DN_P = DN_P1 + DN_P2
    stamp(3)
    lds_wait("L_pw_dn", 8, 2)
    if prio:
        A("s_setprio 3")
    stamp(4)
    A(f"s_mov_b32 s58, {SPIN}")
    A.label("L_h4")
    for k in range(3):
        A(f"buffer_load_dwordx4 v[{16+4*k}:{19+4*k}], v{R0}, s[4:7], 0 offen offset:{16*k} sc1")
    A(f"buffer_load_dword v28, v{R2}, s[4:7], 0 offen sc1")
    A("s_waitcnt vmcnt(0)")
    maxchain("v14", range(16, 29))
    poll_end("L_h4", "v14", psleep)
    stamp(9)
    for c in range(8):
        A(f"v_mov_b32 v{32+c}, 0")
    for ip in range(12):
        for c in range(8):
            A(f"v_dot2c_f32_bf16 v{32+c}, v{16+ip}, v{DN_P[ip][c]}")
    A("s_nop 2")
    for c in range(4):
        A(f"v_permlane32_swap_b32 v{32+c}, v{36+c}")
    for c in range(4):
        A(f"v_add_f32 v{32+c}, v{32+c}, v{36+c}")
    A("s_nop 0")
    for c in range(2):
        A(f"v_permlane16_swap_b32 v{32+c}, v{34+c}")
    for c in range(2):
        A(f"v_add_f32 v{32+c}, v{32+c}, v{34+c}")
    A("s_nop 0")
    dpp_add("v34", "v32", "row_ror:8", "0x3")
    A("s_nop 1")
    dpp_add("v34", "v33", "row_ror:8", "0xc")
    A("s_nop 1")
    dpp_add("v35", "v34", "row_shl:4", "0x5")
    A("s_nop 1")
    dpp_add("v35", "v34", "row_shr:4", "0xa")
    A(f"ds_write_b32 v{R1}, v35")
    A("s_waitcnt lgkmcnt(0)")
    A("s_barrier")
    A("s_cmp_lg_u32 s3, 3")
    A("s_cbranch_scc1 L_fin")
    A("v_and_b32 v12, 31, v2")
    A("v_lshlrev_b32 v12, 2, v12")
    for w in range(4):
        A(f"ds_read_b32 v{16+w}, v12 offset:{GP+128*w}")
    srd(8, 34, 35, None, 1280)
    A("s_lshl_b32 s42, s48, 6")
    A("v_lshlrev_b32 v12, 1, v2")
    A("s_waitcnt lgkmcnt(0)")
    A("v_add_f32 v16, v16, v17")
    A("v_add_f32 v18, v18, v19")
    A("v_add_f32 v16, v16, v18")
    bf16r("v16", "v16")
    A("v_add_f32 v16, v16, v28")
    A("s_nop 1")
    A("v_mov_b32_dpp v17, v16 quad_perm:[1,0,3,2] row_mask:0xf bank_mask:0xf")
    A("v_cvt_pk_bf16_f32 v16, v16, v17")
    A("s_mov_b32 s44, 0x55555555")
    A("s_mov_b32 s45, 0")
    A("s_mov_b64 exec, s[44:45]")
    A("buffer_store_dword v16, v12, s[8:11], s42 offen")
    A("s_mov_b64 exec, -1")
    stamp(10)
    A("s_cmp_lg_u32 s48, 0")
    A("s_cbranch_scc1 L_fin")
    A(f"v_mov_b32 v12, {W_EPOCH}")
    A("v_mov_b32 v13, s59")
    A("s_mov_b64 exec, 1")
    A("buffer_store_dword v13, v12, s[4:7], 0 offen sc1")
    A("s_mov_b64 exec, -1")
    A.label("L_fin")
    if stamps:
        A("s_waitcnt vmcnt(0)")
        A("s_lshl_b32 s64, s2, 9")
        A("s_lshl_b32 s65, s3, 7")
        A("s_add_u32 s64, s64, s65")
        A(f"s_add_u32 s64, s64, {W_ST1}")
        A("v_mov_b32 v3, s64")
        A("s_mov_b64 exec, 1")
        for n in range(11):
            A(f"v_mov_b32 v4, s{70+2*n}")
            A(f"v_mov_b32 v5, s{71+2*n}")
            A(f"global_store_dwordx2 v3, v[4:5], s[38:39] offset:{8*n}")
            A("s_nop 1")
    A.label("L_end")
    A("s_endpgm")

    body_txt = "\n".join(A.L)
    out = [HDR.rstrip("\n"),
           "; Override launch geometry: 256 persistent workgroups (one per CU), 8 waves each.",
           f"; @launch grid=(256,1,1) block=(512,1,1) lds={LDS_BYTES}",
           '.amdgcn_target "amdgcn-amd-amdhsa--gfx950"',
           ".text", f".globl {KN}", ".p2align 8", f".type {KN},@function",
           body_txt,
           '.section .rodata,"a"', ".p2align 6", f".amdhsa_kernel {KN}",
           "  .amdhsa_next_free_vgpr 256", "  .amdhsa_next_free_sgpr 102", "  .amdhsa_accum_offset 256",
           "  .amdhsa_group_segment_fixed_size 0", "  .amdhsa_kernarg_size 96", "  .amdhsa_user_sgpr_count 2",
           "  .amdhsa_user_sgpr_kernarg_segment_ptr 1", "  .amdhsa_system_sgpr_workgroup_id_x 1",
           ".end_amdhsa_kernel", ""]
    return "\n".join(out)


if __name__ == "__main__":
    ap = argparse.ArgumentParser()
    ap.add_argument("-o", default="k4.s")
    ap.add_argument("--stamps", action="store_true")
    ap.add_argument("--pst", action="store_true")
    ap.add_argument("--noprio", action="store_true")
    ap.add_argument("--psleep", type=int, default=0)
    ap.add_argument("--h1sleep", type=int, default=0)
    ap.add_argument("--ns", type=int, default=27)
    ap.add_argument("--early", type=int, default=0)
    ap.add_argument("--sig", default="tick")
    ap.add_argument("--gue", type=int, default=10)
    ap.add_argument("--dne", type=int, default=0)
    ap.add_argument("--woe", action="store_true")
    ap.add_argument("--nopf", action="store_true")
    ap.add_argument("--tsleep", type=int, default=8)
    a = ap.parse_args()
    t = gen(stamps=a.stamps, pst=a.pst, prio=not a.noprio, psleep=a.psleep, NS=a.ns, h1sleep=a.h1sleep, early=a.early,
            sig=a.sig, gue=a.gue, dne=a.dne, woe=a.woe, nopf=a.nopf, tsleep=a.tsleep)
    open(a.o, "w").write(t)
    import hazard
    e = hazard.check(t)
    print(a.o, len(t), "bytes;", len(e), "hazards")
```

```python
import sys, argparse, struct

KN = "sequential_preLN__mha_block_cached__glu_gated_glu__decode_kernel"
REF = open('sequential_preLN__mha_block_cached__glu_gated_glu__decode.s.ref').read()
HDR = REF.split('; Override')[0]

HB = 32768 * 384
TILE = 32 * 384
STEP = 32 * TILE
NTILE = 1024
LOG2E = 0x3fb8aa3b
SCALE = 0x3d93cd3a

XF = 0
QP = 5120
PB = 11264
RC = 12288
AP = 16384
HN = 18432
GP = 19712
FL = 21760
LDS_BYTES = 21792
W_TK = 0x8000
W_EPOCH = 0xF000
W_QX = 0x10000
W_REC = 0x90000
W_PT = 0xD0000
W_H = 0xE8000
H_STR = 0x580
W_HP = 0xF8000
HP_STR = 0xD00
W_SIZE = 0x110000
W_ST0 = 0x200000
W_ST1 = 0x210000
SPIN = 20000


class E:
    def __init__(self):
        self.L = []

    def __call__(self, s):
        for x in s.split("\n"):
            x = x.strip()
            if x:
                self.L.append("  " + x)

    def label(self, n):
        self.L.append(n + ":")


def f32(x):
    return "0x%08x" % struct.unpack("<I", struct.pack("<f", x))[0]


def gen(stamps=False, pst=False, prio=True, NS=27, nopf=False, dry=True, nsets=4, stag=4, stag0=5, mdry=True,
        nsb=None, nred=None, ngu=None, ndn=None, hrep=8, hprep=4, leader=False, psleep=0, dnres=True, diag=False, outfl='', half=0):
    A = E()

    def stamp(n):
        if stamps and not (pst and n >= 3):
            A(f"s_memrealtime s[{70+2*n}:{71+2*n}]")
            A("s_waitcnt lgkmcnt(0)")

    def pstamp(n):
        if stamps and pst:
            A(f"s_memrealtime s[{70+2*n}:{71+2*n}]")
            A("s_waitcnt lgkmcnt(0)")

    def bf16r(dst, src):
        A(f"v_cvt_pk_bf16_f32 {dst}, {src}, {src}")
        A(f"v_and_b32 {dst}, 0xffff0000, {dst}")

    def srd(n, lo, hi, add, nrec):
        if add is None:
            A(f"s_mov_b32 s{n}, s{lo}")
            A(f"s_mov_b32 s{n+1}, s{hi}")
        else:
            A(f"s_add_u32 s{n}, s{lo}, {add}")
            A(f"s_addc_u32 s{n+1}, s{hi}, 0")
        A(f"s_mov_b32 s{n+2}, {nrec}")
        A(f"s_mov_b32 s{n+3}, 0x20000")

    def dpp_add(dst, src, ctrl, bank="0xf"):
        A(f"v_add_f32_dpp {dst}, {src}, {src} {ctrl} row_mask:0xf bank_mask:{bank}")

    def rowsum16(v):
        for r in (8, 4, 2, 1):
            A("s_nop 1")
            dpp_add(v, v, f"row_ror:{r}")

    def poll_end(lab, vmax, sleep=0):
        A(f"v_cmp_eq_u32 vcc, -1, {vmax}")
        A(f"s_cbranch_vccz {lab}_ok")
        if sleep:
            A(f"s_sleep {sleep}")
        A("s_sub_u32 s58, s58, 1")
        A(f"s_cbranch_scc0 {lab}")
        A.label(f"{lab}_ok")

    def maxchain(dst, rs):
        rs = list(rs)
        A(f"v_max3_u32 {dst}, v{rs[0]}, v{rs[1]}, v{rs[2]}")
        rs = rs[3:]
        while len(rs) >= 2:
            A(f"v_max3_u32 {dst}, {dst}, v{rs[0]}, v{rs[1]}")
            rs = rs[2:]
        if rs:
            A(f"v_max_u32 {dst}, {dst}, v{rs[0]}")

    def pair_perm(units, spare, waits=None):
        out = []
        for k, (ar, br) in enumerate(units):
            if waits is not None and waits[k] is not None:
                A(f"s_waitcnt vmcnt({waits[k]})")
            o = []
            for a, b in zip(ar, br):
                A(f"v_perm_b32 v{spare}, v{b}, v{a}, s56")
                A(f"v_perm_b32 v{b}, v{b}, v{a}, s57")
                o += [spare, b]
                spare = a
            out.append(o)
        return out, spare

    def lds_wait(lab, off, sleep):
        A(f"s_mov_b32 s58, {SPIN}")
        A.label(lab)
        A(f"ds_read_b32 v12, v11 offset:{FL+off}")
        A("s_waitcnt lgkmcnt(0)")
        A("v_cmp_ne_u32 vcc, 0, v12")
        A(f"s_cbranch_vccnz {lab}_ok")
        if sleep:
            A(f"s_sleep {sleep}")
        A("s_sub_u32 s58, s58, 1")
        A(f"s_cbranch_scc0 {lab}")
        A.label(f"{lab}_ok")

    def handshake(lab):
        A(f"s_mov_b32 s58, {SPIN}")
        A.label(lab)
        A("global_load_dword v13, v11, s[36:37] sc1")
        A("s_waitcnt vmcnt(0)")
        A("v_cmp_gt_u32 vcc, 32, v13")
        A(f"s_cbranch_vccz {lab}_ok")
        A("s_sleep 32")
        A("s_sub_u32 s58, s58, 1")
        A(f"s_cbranch_scc0 {lab}")
        A.label(f"{lab}_ok")

    def ppoll(lab, sets, nreg, issue, nld, onok):
        n = len(sets)
        for k in range(n):
            issue(sets[k])
            if k < n - 1 and stag0:
                A(f"s_sleep {stag0}")
        A.label(lab)
        for k in range(n):
            A(f"s_waitcnt vmcnt({nld * (n - 1)})")
            maxchain("v14", range(sets[k], sets[k] + nreg))
            A("v_cmp_eq_u32 vcc, -1, v14")
            A(f"s_cbranch_vccnz {lab}_n{k}")
            onok(sets[k])
            A(f"s_branch {lab}_ok")
            A.label(f"{lab}_n{k}")
            if n == 1 and psleep:
                A(f"s_sleep {psleep}")
            issue(sets[k])
            if stag and n > 1:
                A(f"s_sleep {stag}")
        A("s_sub_u32 s58, s58, 1")
        A(f"s_cbranch_scc0 {lab}")
        A.label(f"{lab}_ok")

    def copyregs(dst, src, n):
        for i in range(n):
            A(f"v_mov_b32 v{dst+i}, v{src+i}")

    def arrive(lab_notlast):
        A("s_mov_b64 exec, 1")
        A(f"ds_add_rtn_u32 v12, v10, v3 offset:{FL+16}")
        A("s_mov_b64 exec, -1")
        A("s_waitcnt lgkmcnt(0)")
        A("v_readfirstlane_b32 s42, v12")
        A("s_cmp_lg_u32 s42, 3")
        A(f"s_cbranch_scc1 {lab_notlast}")

    def next_pass(role, top, hs):
        A.label(f"L_{role}_next")
        A("s_cmp_lg_u32 s49, 0")
        A("s_cbranch_scc1 L_fin")
        A.label(f"L_{role}_real")
        A("s_mov_b32 s49, 1")
        A("v_mov_b32 v10, 4")
        if hs:
            if role == "gu" and leader:
                A("s_cmp_lg_u32 s3, 0")
                A("s_cbranch_scc1 L_hs_gu_ok")
            handshake(f"L_hs_{role}")
        stamp(2)
        lds_wait(f"L_pw_{role}", 8, 2)
        if prio:
            A("s_setprio 3")
        stamp(4)
        A(f"s_mov_b32 s58, {SPIN}")
        A(f"s_branch {top}")

    def first_pass(role):
        A("s_mov_b32 s49, 0")
        A("s_mov_b32 s58, 0")
        A("v_mov_b32 v10, 0")
        A("v_mov_b32 v3, 1")
        if not dry:
            A(f"s_branch L_{role}_real")

    NHC = hrep // 8 + (1 if dnres else 0)

    def h_stores(val, addr):
        for k in range(NHC):
            if k == 0:
                A(f"buffer_store_dword {val}, {addr}, s[4:7], 0 offen sc1")
            else:
                A(f"s_mov_b32 s42, {k * 8 * H_STR}")
                A(f"buffer_store_dword {val}, {addr}, s[4:7], s42 offen sc1")

    def hp_stores(val, addr):
        for k in range(hprep // 2):
            if k == 0:
                A(f"buffer_store_dword {val}, {addr}, s[4:7], 0 offen sc1")
            else:
                A(f"s_mov_b32 s42, {k * 2 * HP_STR}")
                A(f"buffer_store_dword {val}, {addr}, s[4:7], s42 offen sc1")

    def addr_sb(dst, t):
        A(f"v_lshrrev_b32 {dst}, 3, v2")
        A(f"v_lshlrev_b32 {dst}, 11, {dst}")
        A(f"v_and_b32 {t}, 7, v2")
        A(f"v_lshl_add_u32 {dst}, {t}, 3, {dst}")
        A("s_lshl_b32 s42, s48, 14")
        A("s_lshl_b32 s43, s60, 6")
        A("s_add_u32 s42, s42, s43")
        A(f"s_add_u32 s42, s42, {W_PT}")
        A(f"v_add_u32 {dst}, s42, {dst}")

    def addr_red(dst, t):
        A(f"v_bfe_u32 {dst}, v2, 1, 3")
        A(f"v_mul_u32_u24 {dst}, {H_STR}, {dst}")
        A(f"v_and_b32 {t}, 1, v2")
        A(f"v_lshl_add_u32 {dst}, {t}, 4, {dst}")
        A(f"v_bfe_u32 {t}, v2, 5, 1")
        A(f"v_lshl_add_u32 {dst}, {t}, 3, {dst}")
        A(f"v_bfe_u32 {t}, v2, 4, 1")
        A(f"v_lshl_add_u32 {dst}, {t}, 2, {dst}")
        A("s_lshl_b32 s42, s48, 5")
        A(f"s_add_u32 s42, s42, {W_H}")
        A(f"v_add_u32 {dst}, s42, {dst}")

    def addr_gu(dst, t):
        A(f"v_and_b32 {dst}, 1, v2")
        A(f"v_mul_u32_u24 {dst}, {HP_STR}, {dst}")
        A(f"v_lshrrev_b32 {t}, 1, v2")
        A(f"v_lshl_add_u32 {dst}, {t}, 2, {dst}")
        A("s_lshl_b32 s42, s48, 7")
        A(f"s_add_u32 s42, s42, {W_HP}")
        A(f"v_add_u32 {dst}, s42, {dst}")

    A.label(KN)
    A("s_cmp_ge_u32 s2, 256")
    A("s_cbranch_scc1 L_end")
    A("s_load_dwordx16 s[16:31], s[0:1], 0")
    A("s_load_dwordx8 s[32:39], s[0:1], 64")
    if stamps:
        A("s_memrealtime s[70:71]")
    A("v_lshrrev_b32 v1, 6, v0")
    A("v_and_b32 v2, 63, v0")
    A("s_lshr_b32 s60, s2, 3")
    A("v_readfirstlane_b32 s3, v1")
    A("s_and_b32 s61, s2, 7")
    A("s_cmp_ge_u32 s3, 4")
    A("s_cbranch_scc1 L_helper")

    VA, VB, VC = 3, 4, 5
    Q0 = 6
    VM, VL = 9, 10
    VQ = 11
    ACC = 12
    VPW, VPR, VFM = 18, 19, 20
    T0, T1, T2, T3 = 21, 22, 23, 24
    VT, VZ, VONE = 25, 26, 27
    S = 32
    P = 48
    KB, VBASE = 128, 192

    def kvload(base, i, srdn, soff):
        vo = (VA, VB, VC)[i // 6]
        off = (i % 6) * 768
        r = base + 4 * i
        A(f"buffer_load_dwordx3 v[{r}:{r+2}], v{vo}, s[{srdn}:{srdn+3}], {soff} offen offset:{off} nt")

    A("s_mul_i32 s62, s60, %d" % HB)
    A("s_lshl_b32 s63, s61, 2")
    A("s_add_u32 s63, s63, s3")
    A("s_mul_i32 s63, s63, %d" % TILE)
    A(f"v_mul_u32_u24 v{VA}, 12, v2")
    A(f"v_add_u32 v{VB}, 4608, v{VA}")
    A(f"v_add_u32 v{VC}, 9216, v{VA}")
    A("s_lshl_b32 s64, s60, 8")
    A(f"s_add_u32 s64, s64, {W_TK}")
    A("s_waitcnt lgkmcnt(0)")
    srd(4, 18, 19, "s62", HB)
    srd(8, 20, 21, "s62", HB)
    A("s_add_u32 s92, s38, s64")
    A("s_addc_u32 s93, s39, 0")
    A("s_barrier")
    for i in range(16):
        kvload(KB, i, 4, "s63")
    for i in range(16):
        kvload(VBASE, i, 8, "s63")
    A(f"v_bfe_u32 v{T0}, v2, 4, 1")
    A(f"v_bfe_u32 v{T1}, v2, 3, 1")
    A(f"v_lshl_add_u32 v{T0}, v{T1}, 1, v{T0}")
    A(f"v_bfe_u32 v{T1}, v2, 2, 1")
    A(f"v_lshl_add_u32 v{T0}, v{T1}, 2, v{T0}")
    A(f"v_bfe_u32 v{T1}, v2, 1, 1")
    A(f"v_lshl_add_u32 v{T0}, v{T1}, 3, v{T0}")
    A(f"v_lshlrev_b32 v{T0}, 3, v{T0}")
    A(f"v_and_b32 v{T1}, 1, v2")
    A(f"v_lshl_add_u32 v{T0}, v{T1}, 2, v{T0}")
    A(f"v_lshrrev_b32 v{T2}, 5, v2")
    A(f"v_lshlrev_b32 v{T2}, 7, v{T2}")
    A(f"s_lshl_b32 s64, s3, 8")
    A(f"s_add_u32 s64, s64, {PB}")
    A(f"v_add_u32 v{VPR}, s64, v{T2}")
    A(f"v_add_u32 v{VPW}, v{VPR}, v{T0}")
    A(f"v_mov_b32 v{T2}, 0xffff")
    A(f"v_mov_b32 v{T3}, 0xffff0000")
    A(f"v_cmp_eq_u32 vcc, 1, v{T1}")
    A("s_mov_b32 s66, 0xcccccccc")
    A("s_mov_b32 s67, 0xcccccccc")
    A(f"v_cndmask_b32 v{VFM}, v{T2}, v{T3}, vcc")
    A(f"v_mov_b32 v{VM}, 0xff800000")
    A(f"v_mov_b32 v{VL}, 0")
    for j in range(6):
        A(f"v_mov_b32 v{ACC+j}, 0")
    A(f"v_and_b32 v{VQ}, 31, v2")
    A(f"v_mul_u32_u24 v{VQ}, 24, v{VQ}")
    A(f"v_mov_b32 v{VZ}, 0")
    A(f"v_mov_b32 v{VONE}, 1")
    A(f"s_mov_b32 s65, {NS-2}")
    A("s_mov_b32 s50, 0")
    A(f"s_mov_b32 s68, {SCALE:#x}")
    A(f"s_mov_b32 s69, {LOG2E:#x}")
    A("s_barrier")
    stamp(1)
    for w in range(8):
        for j in range(3):
            A(f"ds_read_b64 v[{S+6*w+2*j}:{S+6*w+2*j+1}], v{VQ} offset:{QP + 768*w + 8*j}")
    A("s_waitcnt lgkmcnt(0)")
    for st in (1, 2, 4):
        for w in range(0, 8, 2 * st):
            for j in range(6):
                A(f"v_add_f32 v{S+6*w+j}, v{S+6*w+j}, v{S+6*(w+st)+j}")
    for j in range(3):
        A(f"v_cvt_pk_bf16_f32 v{Q0+j}, v{S+2*j}, v{S+2*j+1}")

    def body(W, tag):
        hi_so = "s96" if (tag == "d" and half) else "s63"
        for i in range(16):
            r = KB + 4 * i
            A(f"s_waitcnt vmcnt({W})")
            A(f"v_dot2_f32_bf16 v{S+i}, v{r}, v{Q0}, 0")
            A(f"v_dot2_f32_bf16 v{S+i}, v{r+1}, v{Q0+1}, v{S+i}")
            A(f"v_dot2_f32_bf16 v{S+i}, v{r+2}, v{Q0+2}, v{S+i}")
            kvload(KB, i, 4, "s63" if i < 8 else hi_so)
            if i % 2 == 1 and i >= 3:
                a = S + i - 3
                A(f"v_permlane16_swap_b32 v{a}, v{a+1}")
                A(f"v_add_f32 v{a}, v{a}, v{a+1}")
        A("s_nop 0")
        A(f"v_permlane16_swap_b32 v{S+14}, v{S+15}")
        A(f"v_add_f32 v{S+14}, v{S+14}, v{S+15}")
        for q in range(4):
            dpp_add(f"v{S+4*q}", f"v{S+4*q}", "row_ror:8", "0x3")
        for q in range(4):
            dpp_add(f"v{S+4*q}", f"v{S+4*q+2}", "row_ror:8", "0xc")
        A("s_nop 0")
        for r in range(2):
            dpp_add(f"v{S+8*r}", f"v{S+8*r}", "row_half_mirror", "0x5")
        A("s_nop 0")
        for r in range(2):
            dpp_add(f"v{S+8*r}", f"v{S+8*r+4}", "row_half_mirror", "0xa")
        A("s_nop 1")
        dpp_add(f"v{S+1}", f"v{S}", "quad_perm:[2,3,0,1]")
        dpp_add(f"v{S+2}", f"v{S+8}", "quad_perm:[2,3,0,1]")
        A(f"v_cndmask_b32 v{S}, v{S+1}, v{S+2}, s[66:67]")
        A("s_nop 1")
        dpp_add(f"v{T0}", f"v{S}", "quad_perm:[1,0,3,2]")
        bf16r(f"v{T0}", f"v{T0}")
        A(f"v_mul_f32 v{T0}, s68, v{T0}")
        bf16r(f"v{T0}", f"v{T0}")
        if tag == "d" and half:
            A(f"v_cndmask_b32 v{T0}, v{T0}, v28, s[98:99]")
        A("s_nop 1")
        A(f"v_max_f32_dpp v{T1}, v{T0}, v{T0} row_ror:8 row_mask:0xf bank_mask:0xf")
        A("s_nop 1")
        A(f"v_max_f32_dpp v{T1}, v{T1}, v{T1} row_ror:4 row_mask:0xf bank_mask:0xf")
        A("s_nop 1")
        A(f"v_max_f32_dpp v{T1}, v{T1}, v{T1} row_ror:2 row_mask:0xf bank_mask:0xf")
        A(f"v_mov_b32 v{T2}, v{T1}")
        A("s_nop 1")
        A(f"v_permlane16_swap_b32 v{T1}, v{T2}")
        A(f"v_max_f32 v{T1}, v{T1}, v{T2}")
        A(f"v_mov_b32 v{T2}, v{T1}")
        A("s_nop 1")
        A(f"v_permlane32_swap_b32 v{T1}, v{T2}")
        A(f"v_max_f32 v{T1}, v{T1}, v{T2}")
        A(f"v_cmp_gt_f32 vcc, v{T1}, v{VM}")
        A(f"s_cbranch_vccz L_nors{tag}")
        A(f"v_sub_f32 v{T2}, v{VM}, v{T1}")
        A(f"v_mul_f32 v{T2}, s69, v{T2}")
        A(f"v_exp_f32 v{T2}, v{T2}")
        A(f"v_mov_b32 v{VM}, v{T1}")
        for j in range(6):
            A(f"v_mul_f32 v{ACC+j}, v{ACC+j}, v{T2}")
        A(f"v_mul_f32 v{VL}, v{VL}, v{T2}")
        A.label(f"L_nors{tag}")
        A(f"v_sub_f32 v{T0}, v{T0}, v{VM}")
        A(f"v_mul_f32 v{T0}, s69, v{T0}")
        A(f"v_exp_f32 v{T0}, v{T0}")
        A("s_nop 0")
        A(f"v_cvt_pk_bf16_f32 v{T1}, v{T0}, v{T0}")
        A(f"v_add_f32 v{VL}, v{VL}, v{T0}")
        A(f"v_and_b32 v{T1}, v{T1}, v{VFM}")
        A(f"ds_write_b32 v{VPW}, v{T1}")
        for j in range(8):
            A(f"ds_read_b128 v[{P+4*j}:{P+4*j+3}], v{VPR} offset:{16*j}")
        for i in range(16):
            r = VBASE + 4 * i
            if i % 2 == 0:
                A(f"s_waitcnt vmcnt({W}) lgkmcnt({7 - i//2})")
            else:
                A(f"s_waitcnt vmcnt({W})")
            lo, hi = P + 2 * i, P + 2 * i + 1
            for j in range(3):
                A(f"v_dot2_f32_bf16 v{ACC+2*j}, v{r+j}, v{lo}, v{ACC+2*j}")
                A(f"v_dot2_f32_bf16 v{ACC+2*j+1}, v{r+j}, v{hi}, v{ACC+2*j+1}")
            kvload(VBASE, i, 8, "s63" if i < 8 else hi_so)

    A.label("L_loop")
    A(f"s_add_u32 s63, s63, {STEP}")
    body(31, "s")
    A("s_sub_u32 s65, s65, 1")
    A("s_cmp_lg_u32 s65, 0")
    A("s_cbranch_scc1 L_loop")
    A(f"s_add_u32 s63, s63, {STEP}")
    A("s_mov_b32 s94, 0")
    TK1 = NTILE - half
    TEND = TK1 + 2 * half
    if half:
        A("s_mov_b32 s96, s63")
        A("s_mov_b64 s[98:99], 0")
        A("s_mov_b32 s97, 0")
        A("v_mov_b32 v28, 0xff800000")
    A("s_branch L_dent")
    A.label("L_dtop")
    A("s_waitcnt vmcnt(32)")
    A(f"v_readfirstlane_b32 s94, v{VT}")
    A(f"s_add_u32 s94, s94, {NS*32}")
    A(f"s_min_u32 s94, s94, {TEND}")
    if half:
        A("s_cmp_lg_u32 s97, 0")
        A("s_cselect_b64 s[98:99], s[66:67], 0")
        A(f"s_add_u32 s95, s94, {TK1}")
        A(f"s_mul_i32 s95, s95, {TILE // 2}")
        A(f"s_mul_i32 s63, s94, {TILE}")
        A(f"s_cmp_ge_u32 s94, {TK1}")
        A("s_cselect_b32 s63, s95, s63")
        A(f"s_cselect_b32 s96, {HB}, s63")
        A("s_cselect_b32 s97, 1, 0")
    else:
        A(f"s_mul_i32 s63, s94, {TILE}")
    A.label("L_dent")
    A("s_mov_b64 exec, 1")
    A(f"global_atomic_add v{VT}, v{VZ}, v{VONE}, s[92:93] sc0")
    A("s_mov_b64 exec, -1")
    body(32, "d")
    A(f"s_cmp_lt_u32 s94, {TEND}")
    A("s_cbranch_scc1 L_dtop")
    stamp(2)
    A(f"v_mov_b32 v{T0}, v{VL}")
    A("s_nop 1")
    A(f"v_permlane32_swap_b32 v{VL}, v{T0}")
    A(f"v_add_f32 v{VL}, v{VL}, v{T0}")
    A(f"v_mov_b32 v{T0}, v{VL}")
    A("s_nop 1")
    A(f"v_permlane16_swap_b32 v{VL}, v{T0}")
    A(f"v_add_f32 v{VL}, v{VL}, v{T0}")
    rowsum16(f"v{VL}")
    A(f"v_mul_f32 v{VL}, 0.5, v{VL}")
    for j in range(3):
        A(f"v_permlane32_swap_b32 v{ACC+2*j}, v{ACC+2*j+1}")
    for j in range(3):
        A(f"v_add_f32 v{ACC+2*j}, v{ACC+2*j}, v{ACC+2*j+1}")
    A(f"v_lshrrev_b32 v{T1}, 5, v2")
    A(f"v_lshl_add_u32 v{T0}, v{T1}, 2, v{VQ}")
    A("s_lshl_b32 s64, s3, 10")
    A(f"s_add_u32 s64, s64, {RC}")
    A(f"v_add_u32 v{T0}, s64, v{T0}")
    for j in range(3):
        A(f"ds_write_b32 v{T0}, v{ACC+2*j} offset:{8*j}")
    A(f"v_mov_b32 v{T1}, s64")
    A("s_mov_b64 exec, 1")
    A(f"ds_write_b32 v{T1}, v{VM} offset:768")
    A(f"ds_write_b32 v{T1}, v{VL} offset:772")
    A(f"ds_add_rtn_u32 v{T2}, v{VZ}, v{VONE} offset:{FL+4}")
    A("s_mov_b64 exec, -1")
    A(f"v_lshlrev_b32 v{T0}, 4, v2")
    A("s_lshl_b32 s64, s2, 10")
    A(f"s_add_u32 s64, s64, {W_REC}")
    A(f"v_add_u32 v{T3}, s64, v{T0}")
    srd(12, 38, 39, None, W_SIZE)
    A("s_waitcnt lgkmcnt(0)")
    A(f"v_readfirstlane_b32 s64, v{T2}")
    A("s_cmp_lg_u32 s64, 3")
    A("s_cbranch_scc1 L_sfin")
    A.label("L_merge")
    for w in range(4):
        A(f"ds_read_b64 v[{48+2*w}:{49+2*w}], v{VZ} offset:{RC+1024*w+768}")
    A("s_mov_b32 exec_hi, 0x1ffff")
    for w in range(4):
        A(f"ds_read_b128 v[{32+4*w}:{35+4*w}], v{T0} offset:{RC+1024*w}")
    A("v_cmp_eq_u32 vcc, 48, v2")
    A("s_waitcnt lgkmcnt(4)")
    A("v_max3_f32 v56, v48, v50, v52")
    A("v_max_f32 v56, v56, v54")
    for w in range(4):
        A(f"v_sub_f32 v{57+w}, v{48+2*w}, v56")
    for w in range(4):
        A(f"v_mul_f32 v{57+w}, s69, v{57+w}")
    for w in range(4):
        A(f"v_exp_f32 v{57+w}, v{57+w}")
    A("s_waitcnt lgkmcnt(0)")
    for j in range(4):
        A(f"v_mul_f32 v{64+j}, v{32+j}, v57")
    for w in range(1, 4):
        for j in range(4):
            A(f"v_fmac_f32 v{64+j}, v{32+4*w+j}, v{57+w}")
    A("v_cndmask_b32 v64, v64, v56, vcc")
    A("s_cmp_lg_u32 s50, 0")
    A("s_cbranch_scc1 L_mback")
    A(f"buffer_store_dwordx4 v[64:67], v{T3}, s[12:15], 0 offen sc1")
    A("s_mov_b64 exec, 1")
    A(f"ds_write_b32 v{VZ}, v{VONE} offset:{FL+8}")
    A("s_mov_b64 exec, -1")
    A.label("L_sfin")
    if stamps:
        stamp(3)
        A("s_cmp_lg_u32 s3, 0")
        A("s_cbranch_scc1 L_end")
        A("s_lshl_b32 s64, s2, 7")
        A(f"s_add_u32 s64, s64, {W_ST0}")
        A("v_mov_b32 v3, s64")
        for n in range(3):
            A(f"v_mov_b32 v4, s{70+2*n}")
            A(f"v_mov_b32 v5, s{71+2*n}")
            A(f"global_store_dwordx2 v3, v[4:5], s[38:39] offset:{8*n}")
            A("s_nop 1")
    A("s_endpgm")

    A.label("L_helper")
    if prio:
        A("s_setprio 3")
    A("s_sub_u32 s3, s3, 4")
    A(f"v_mov_b32 v23, {W_EPOCH}")
    A("s_cmp_eq_u32 s3, 3")
    A("s_cbranch_scc1 L_g3")
    EP = 60
    A("v_lshrrev_b32 v3, 3, v2")
    A("v_and_b32 v4, 7, v2")
    A("v_mul_u32_u24 v5, 12288, v3")
    A("v_lshl_add_u32 v5, v4, 4, v5")
    A("v_lshlrev_b32 v6, 4, v2")
    A("v_lshlrev_b32 v7, 2, v2")
    A("s_mul_i32 s62, s60, 384")
    A("s_lshl_b32 s63, s3, 7")
    A("s_add_u32 s62, s62, s63")
    A("s_mul_i32 s63, s61, %d" % (80 * 12288))
    A("s_sub_u32 s65, %d, s62" % (640 * 12288))
    A("s_waitcnt lgkmcnt(0)")
    srd(8, 16, 17, None, 1280)
    A("buffer_load_dwordx4 v[16:19], v6, s[8:11], 0 offen")
    A("buffer_load_dword v20, v7, s[8:11], 0 offen offset:1024")
    srd(12, 22, 23, "s62", "s65")
    WQ = 64
    for i in range(10):
        A(f"buffer_load_dwordx4 v[{WQ+4*i}:{WQ+4*i+3}], v5, s[12:15], s63 offen nt")
        if i < 9:
            A("s_add_u32 s63, s63, %d" % (8 * 12288))
    srd(4, 38, 39, None, W_SIZE)
    A(f"buffer_load_dword v{EP}, v23, s[4:7], 0 offen sc1")
    A("s_barrier")

    def ln_sums(F, a, b):
        A(f"v_add_f32 {a}, v{F}, v{F+1}")
        A(f"v_mul_f32 {b}, v{F}, v{F}")
        A(f"v_fmac_f32 {b}, v{F+1}, v{F+1}")
        for i in range(2, 10):
            A(f"v_add_f32 {a}, {a}, v{F+i}")
            A(f"v_fmac_f32 {b}, v{F+i}, v{F+i}")
        A("s_nop 1")
        A(f"v_permlane32_swap_b32 {a}, {b}")
        A(f"v_add_f32 {a}, {a}, {b}")
        A(f"v_mov_b32 {b}, {a}")
        A("s_nop 1")
        A(f"v_permlane16_swap_b32 {a}, {b}")
        A(f"v_add_f32 {a}, {a}, {b}")
        rowsum16(a)
        A(f"v_mov_b32 {b}, {a}")
        A("s_nop 1")
        A(f"v_permlane32_swap_b32 {a}, {b}")

    pstamp(3)
    A("s_waitcnt vmcnt(11)")
    pstamp(4)
    F = 21
    for i in range(5):
        A(f"v_lshlrev_b32 v{F+2*i}, 16, v{16+i}")
        A(f"v_and_b32 v{F+2*i+1}, 0xffff0000, v{16+i}")
    ln_sums(F, "v12", "v13")
    A(f"v_mul_f32 v12, {f32(1/640)}, v12")
    A(f"v_mul_f32 v13, {f32(1/640)}, v13")
    A("v_fma_f32 v13, -v12, v12, v13")
    bf16r("v12", "v12")
    bf16r("v13", "v13")
    A(f"v_add_f32 v13, {f32(1e-5)}, v13")
    bf16r("v13", "v13")
    A("v_sqrt_f32 v13, v13")
    A("s_nop 0")
    bf16r("v13", "v13")
    A("v_rcp_f32 v13, v13")
    for i in range(5):
        A(f"v_sub_f32 v{F+2*i}, v{F+2*i}, v12")
        A(f"v_sub_f32 v{F+2*i+1}, v{F+2*i+1}, v12")
        A(f"v_cvt_pk_bf16_f32 v{16+i}, v{F+2*i}, v{F+2*i+1}")
    for i in range(5):
        A(f"v_lshlrev_b32 v{F+2*i}, 16, v{16+i}")
        A(f"v_and_b32 v{F+2*i+1}, 0xffff0000, v{16+i}")
    for i in range(5):
        A(f"v_mul_f32 v{F+2*i}, v{F+2*i}, v13")
        A(f"v_mul_f32 v{F+2*i+1}, v{F+2*i+1}, v13")
        A(f"v_cvt_pk_bf16_f32 v{16+i}, v{F+2*i}, v{F+2*i+1}")
    for i in range(5):
        A(f"v_and_b32 v{32+4*i}, 0xffff, v{16+i}")
        A(f"v_lshlrev_b32 v{33+4*i}, 16, v{16+i}")
        A(f"v_lshrrev_b32 v{34+4*i}, 16, v{16+i}")
        A(f"v_and_b32 v{35+4*i}, 0xffff0000, v{16+i}")
    A("v_lshlrev_b32 v12, 6, v2")
    for i in range(4):
        A(f"ds_write_b128 v12, v[{32+4*i}:{35+4*i}] offset:{XF+16*i}")
    A(f"ds_write_b128 v6, v[48:51] offset:{XF+4096}")
    A("s_mul_i32 s64, s61, 640")
    A("v_lshlrev_b32 v12, 3, v3")
    A("v_add_u32 v12, s64, v12")
    for i in range(10):
        A(f"ds_read_b64 v[{32+2*i}:{33+2*i}], v12 offset:{XF+64*i}")
    for j in range(8):
        A(f"v_mov_b32 v{52+j}, 0")
    pstamp(5)
    for i in range(10):
        A(f"s_waitcnt vmcnt({10 - i}) lgkmcnt({0 if (stamps and pst) else 9-i})")
        for j in range(4):
            A(f"v_dot2c_f32_bf16 v{52+2*j}, v{WQ+4*i+j}, v{32+2*i}")
            A(f"v_dot2c_f32_bf16 v{53+2*j}, v{WQ+4*i+j}, v{33+2*i}")
    pstamp(6)
    A("v_bfe_u32 v12, v2, 5, 1")
    A("v_bfe_u32 v13, v2, 4, 1")
    A("v_lshl_add_u32 v12, v13, 1, v12")
    A("v_bfe_u32 v13, v2, 3, 1")
    for j in range(4):
        A(f"v_permlane32_swap_b32 v{52+2*j}, v{53+2*j}")
    A("v_lshl_add_u32 v12, v13, 2, v12")
    A("v_lshl_add_u32 v12, v4, 3, v12")
    for j in range(4):
        A(f"v_add_f32 v{52+2*j}, v{52+2*j}, v{53+2*j}")
    A("s_lshl_b32 s64, s2, 11")
    A("s_lshl_b32 s63, s3, 9")
    A("v_permlane16_swap_b32 v52, v54")
    A("v_permlane16_swap_b32 v56, v58")
    A("s_add_u32 s64, s64, s63")
    A(f"s_add_u32 s64, s64, {W_QX}")
    A("v_add_f32 v52, v52, v54")
    A("v_add_f32 v56, v56, v58")
    A("v_lshlrev_b32 v12, 3, v12")
    A("v_add_u32 v12, s64, v12")
    dpp_add("v14", "v52", "row_ror:8", "0x3")
    A("s_nop 1")
    dpp_add("v14", "v56", "row_ror:8", "0xc")
    A("s_waitcnt vmcnt(0)")
    A(f"v_add_u32 v15, 1, v{EP}")
    A("buffer_store_dwordx2 v[14:15], v12, s[4:7], 0 offen sc1")
    pstamp(7)
    A("s_branch L_gather")

    def role_sgprs():
        A("s_add_u32 s40, s60, s61")
        A("s_and_b32 s40, s40, 7")
        A("s_mov_b32 s41, 0")
        A("s_add_u32 s48, s60, 28")
        A("s_cmp_lt_u32 s60, 12")
        A("s_cselect_b32 s41, 3, s41")
        A("s_add_u32 s43, s60, 16")
        A("s_cmp_lt_u32 s60, 4")
        A("s_cselect_b32 s41, 2, s41")
        A("s_cselect_b32 s48, s43, s48")
        A("s_lshl_b32 s43, s60, 1")
        A("s_add_u32 s43, s43, s40")
        A("s_sub_u32 s43, s43, 48")
        A("s_cmp_ge_u32 s60, 24")
        A("s_cselect_b32 s41, 2, s41")
        A("s_cselect_b32 s48, s43, s48")
        A("s_cselect_b32 s42, 2, 1")
        A("s_cselect_b32 s43, s43, s60")
        A("s_cmp_eq_u32 s40, 0")
        A("s_cselect_b32 s41, s42, s41")
        A("s_cselect_b32 s48, s43, s48")
        A("s_cmp_eq_u32 s40, 2")
        A("s_cselect_b32 s41, 3, s41")
        A("s_cselect_b32 s48, s60, s48")
        A("s_sub_u32 s43, s40, 3")
        A("s_cmp_ge_u32 s40, 3")
        A("s_cselect_b32 s41, 4, s41")
        A("s_cselect_b32 s48, s43, s48")

    A.label("L_g3")
    role_sgprs()
    addr_sb("v5", "v13")
    addr_red("v8", "v13")
    addr_gu("v20", "v13")
    A("s_lshl_b32 s42, s2, 10")
    A(f"s_add_u32 s42, s42, {W_REC}")
    A("v_lshlrev_b32 v16, 4, v2")
    A("v_add_u32 v16, s42, v16")
    A("s_lshl_b32 s64, s60, 8")
    A(f"s_add_u32 s64, s64, {W_TK}")
    A("v_mov_b32 v21, s64")
    A("v_mov_b32 v22, 0")
    for i in range(4):
        A(f"v_mov_b32 v{24+i}, 0")
    A(f"ds_write_b128 v22, v[24:27] offset:{FL}")
    A(f"ds_write_b128 v22, v[24:27] offset:{FL+16}")
    for i in range(4):
        A(f"v_mov_b32 v{12+i}, -1")
    A("s_waitcnt lgkmcnt(0)")
    srd(4, 38, 39, None, W_SIZE)
    A(f"buffer_load_dword v{EP}, v23, s[4:7], 0 offen sc1")
    A("buffer_store_dwordx4 v[12:15], v16, s[4:7], 0 offen sc1")
    A("s_cmp_lg_u32 s61, 0")
    A("s_cbranch_scc1 L_notk")
    A("s_mov_b64 exec, 1")
    A("buffer_store_dword v22, v21, s[4:7], 0 offen sc1")
    A("s_mov_b64 exec, -1")
    A.label("L_notk")
    A("s_cmp_eq_u32 s41, 4")
    A("s_cbranch_scc0 L_clr_nsb")
    A("buffer_store_dwordx2 v[12:13], v5, s[4:7], 0 offen sc1")
    A("s_branch L_clr_done")
    A.label("L_clr_nsb")
    A("s_cmp_eq_u32 s41, 1")
    A("s_cbranch_scc1 L_clr_gu")
    A("s_cmp_eq_u32 s41, 3")
    A("s_cbranch_scc0 L_clr_done")
    h_stores("v12", "v8")
    A("s_branch L_clr_done")
    A.label("L_clr_gu")
    hp_stores("v12", "v20")
    A.label("L_clr_done")
    A("s_barrier")
    A("s_lshl_b32 s64, s2, 11")
    A(f"s_add_u32 s64, s64, {W_QX + 1536}")
    A("v_mov_b32 v12, s64")
    A("s_waitcnt vmcnt(0)")
    A(f"v_add_u32 v15, 1, v{EP}")
    A("v_mov_b32 v14, 0")
    A("s_mov_b64 exec, 1")
    A("buffer_store_dwordx2 v[14:15], v12, s[4:7], 0 offen sc1")
    A("s_mov_b64 exec, -1")
    A.label("L_gather")
    A("s_lshl_b32 s62, s3, 1")
    A("s_lshl_b32 s63, s60, 3")
    A("s_add_u32 s63, s63, s62")
    A("s_lshl_b32 s63, s63, 11")
    A(f"s_add_u32 s63, s63, {W_QX}")
    A("s_mul_i32 s64, s62, 768")
    A(f"s_add_u32 s64, s64, {QP}")
    A("v_lshlrev_b32 v32, 4, v2")
    A("v_add_u32 v32, s63, v32")
    A("v_cmp_gt_u32 vcc, 32, v2")
    A("v_add_u32 v33, 1024, v32")
    A(f"v_add_u32 v34, {2048 - 512}, v32")
    A("v_cndmask_b32 v33, v34, v33, vcc")
    A(f"v_add_u32 v34, {2048 + 512}, v32")
    A("v_lshlrev_b32 v35, 3, v2")
    A("v_add_u32 v35, s64, v35")
    A("v_add_u32 v36, 512, v35")
    A(f"v_add_u32 v37, {768 - 256}, v35")
    A("v_cndmask_b32 v36, v37, v36, vcc")
    A(f"v_add_u32 v37, {768 + 256}, v35")
    A("v_lshrrev_b32 v38, 5, v2")
    A("v_lshlrev_b32 v38, 11, v38")
    A(f"s_add_u32 s64, s63, 1540")
    A("v_add_u32 v38, s64, v38")
    A(f"v_add_u32 v15, 1, v{EP}")
    A(f"s_mov_b32 s58, {SPIN}")
    A.label("L_qx")
    for i in range(3):
        A(f"buffer_load_dwordx4 v[{40+4*i}:{43+4*i}], v{32+i}, s[4:7], 0 offen sc1")
    A("buffer_load_dword v39, v38, s[4:7], 0 offen sc1")
    A("s_waitcnt vmcnt(0)")
    A("v_xor_b32 v52, v41, v15")
    A("v_xor_b32 v53, v43, v15")
    A("v_xor_b32 v54, v45, v15")
    A("v_xor_b32 v55, v47, v15")
    A("v_xor_b32 v56, v49, v15")
    A("v_xor_b32 v57, v51, v15")
    A("v_xor_b32 v58, v39, v15")
    A("v_or3_b32 v52, v52, v53, v54")
    A("v_or3_b32 v55, v55, v56, v57")
    A("v_or3_b32 v52, v52, v55, v58")
    A("v_cmp_ne_u32 vcc, 0, v52")
    A("s_cbranch_vccz L_qx_ok")
    A("s_sub_u32 s58, s58, 1")
    A("s_cbranch_scc0 L_qx")
    A.label("L_qx_ok")
    for i in range(3):
        A(f"ds_write2_b32 v{35+i}, v{40+4*i}, v{42+4*i} offset0:0 offset1:1")
    A("v_readfirstlane_b32 s59, v15")
    A("s_waitcnt lgkmcnt(0)")
    pstamp(8)
    A("s_barrier")
    if prio:
        A("s_setprio 0")
    stamp(1)

    if stamps:
        for n in range(2, 11):
            A(f"s_mov_b32 s{70+2*n}, 0")
            A(f"s_mov_b32 s{71+2*n}, 0")
    A("v_mov_b32 v11, 0")
    A("s_mov_b32 s56, 0x05040100")
    A("s_mov_b32 s57, 0x07060302")
    A("s_mov_b32 s51, 0xffff0000")
    A(f"s_mov_b32 s69, {LOG2E:#x}")
    A("s_cmp_eq_u32 s3, 3")
    A("s_cbranch_scc1 L_pub")
    role_sgprs()
    if mdry:
        A("s_cmp_lg_u32 s3, 0")
        A("s_cbranch_scc1 L_disp")
        A("s_mov_b32 s50, 1")
        A(f"v_lshlrev_b32 v{T0}, 4, v2")
        A(f"v_mov_b32 v{T3}, 0")
        A(f"v_mov_b32 v{VZ}, 0")
        A(f"v_mov_b32 v{VONE}, 1")
        A("s_branch L_merge")
    A.label("L_mback")
    A("s_mov_b64 exec, -1")
    A("s_branch L_disp")
    A.label("L_pub")
    A("s_cmp_lg_u32 s61, 0")
    A("s_cbranch_scc1 L_disp")
    A("v_mov_b32 v13, 1")
    A("s_mov_b64 exec, 1")
    A("global_atomic_add v11, v13, s[36:37]")
    A("s_mov_b64 exec, -1")
    A.label("L_disp")
    A("s_cmp_eq_u32 s41, 4")
    A("s_cbranch_scc1 L_sb")
    A("s_cmp_eq_u32 s41, 1")
    A("s_cbranch_scc1 L_gu")
    A("s_cmp_eq_u32 s41, 2")
    A("s_cbranch_scc1 L_dn")
    A("s_cmp_eq_u32 s41, 3")
    A("s_cbranch_scc0 L_fin")
    A("s_cmp_lg_u32 s3, 3")
    A("s_cbranch_scc1 L_fin")

    addr_red("v7", "v13")
    A("v_lshlrev_b32 v8, 5, v2")
    A("s_lshl_b32 s42, s48, 11")
    A(f"s_add_u32 s42, s42, {W_PT}")
    A("v_add_u32 v8, s42, v8")
    A("v_and_b32 v14, 1, v2")
    A("v_lshlrev_b32 v14, 3, v14")
    A("v_bfe_u32 v15, v2, 3, 1")
    A("v_add_u32 v14, v14, v15")
    A("v_bfe_u32 v13, v2, 4, 1")
    A("v_lshl_add_u32 v14, v13, 1, v14")
    A("v_bfe_u32 v13, v2, 5, 1")
    A("v_lshl_add_u32 v14, v13, 2, v14")
    A("v_lshlrev_b32 v14, 1, v14")
    srd(8, 16, 17, None, 1280)
    A("s_lshl_b32 s42, s48, 5")
    A("buffer_load_ushort v6, v14, s[8:11], s42 offen")
    A("v_mov_b32 v9, 0x07060302")
    A("v_mov_b32 v13, 0x03020706")
    A("v_cmp_eq_u32 vcc, 1, v15")
    A("s_nop 1")
    A("v_cndmask_b32 v9, v9, v13, vcc")
    A("s_waitcnt vmcnt(0)")
    A("v_lshlrev_b32 v6, 16, v6")
    stamp(3)
    first_pass("red")
    A.label("L_red_top")

    def red_issue(b):
        A(f"buffer_load_dwordx4 v[{b}:{b+3}], v8, s[4:7], 0 offen sc1")
        A(f"buffer_load_dwordx4 v[{b+4}:{b+7}], v8, s[4:7], 0 offen offset:16 sc1")
    ppoll("L_h2", [32 + 8 * k for k in range(nred or nsets)], 8, red_issue, 2, lambda b: copyregs(16, b, 8))
    stamp(7)
    for j in range(4):
        A(f"v_permlane32_swap_b32 v{16+j}, v{20+j}")
    for j in range(4):
        A(f"v_add_f32 v{16+j}, v{16+j}, v{20+j}")
    A("s_nop 0")
    A("v_permlane16_swap_b32 v16, v18")
    A("v_permlane16_swap_b32 v17, v19")
    A("v_add_f32 v16, v16, v18")
    A("v_add_f32 v17, v17, v19")
    A("s_nop 0")
    dpp_add("v18", "v16", "row_ror:8", "0x3")
    A("s_nop 1")
    dpp_add("v18", "v17", "row_ror:8", "0xc")
    A("s_nop 1")
    dpp_add("v19", "v18", "row_shl:4", "0x5")
    A("s_nop 1")
    dpp_add("v19", "v18", "row_shr:4", "0xa")
    A("s_nop 1")
    dpp_add("v19", "v19", "quad_perm:[2,3,0,1]")
    bf16r("v19", "v19")
    A("v_add_f32 v19, v19, v6")
    bf16r("v19", "v19")
    A("s_nop 1")
    A("v_mov_b32_dpp v18, v19 row_ror:8 row_mask:0xf bank_mask:0xf")
    A("v_perm_b32 v19, v18, v19, v9")
    A("s_cmp_eq_u32 s49, 0")
    A("s_cbranch_scc1 L_red_next")
    h_stores("v19", "v7")
    stamp(8)
    if diag:
        A("s_waitcnt vmcnt(0)")
        stamp(9)
        A("s_mov_b32 s80, s58")
        A("s_mov_b32 s81, 0")
    next_pass("red", "L_red_top", True)

    A.label("L_sb")
    V_H1, V_B = 4, 5
    WO_SP, WO_RAW = 207, 208
    addr_sb(f"v{V_B}", "v13")
    A("v_and_b32 v12, 15, v2")
    A("v_lshrrev_b32 v13, 4, v2")
    A("v_mul_u32_u24 v13, 12, v13")
    A("s_mul_i32 s42, s3, 48")
    A("v_add3_u32 v13, v13, v12, s42")
    A("v_min_u32 v14, 13, v12")
    A("v_add_u32 v14, 180, v14")
    A("v_cmp_gt_u32 vcc, 12, v12")
    A("s_nop 1")
    A("v_cndmask_b32 v13, v14, v13, vcc")
    A(f"v_lshlrev_b32 v{V_H1}, 2, v13")
    A("s_mul_i32 s42, s60, 192")
    A("s_mul_i32 s43, s3, 48")
    A("s_add_u32 s42, s42, s43")
    A("s_mul_i32 s42, s42, 1280")
    A("s_lshl_b32 s43, s48, 8")
    A("s_add_u32 s42, s42, s43")
    A("s_sub_u32 s43, %d, s42" % (6144 * 1280))
    srd(8, 24, 25, "s42", "s43")
    A("v_lshlrev_b32 v16, 2, v2")
    A("s_lshl_b32 s42, s60, 13")
    A(f"s_add_u32 s62, s42, {W_REC}")
    A("s_add_u32 s63, s62, 4096")
    A("v_lshlrev_b32 v7, 3, v2")
    A("s_lshl_b32 s42, s3, 9")
    A("v_add_u32 v6, s42, v7")
    if not nopf:
        for r in range(48):
            if r % 3 == 0:
                A(f"s_mov_b32 s42, {(r//3)*3840}")
            A(f"buffer_load_dword v{WO_RAW+r}, v16, s[8:11], s42 offen offset:{(r%3)*1280} nt")
    wo_units = [([WO_RAW + 2 * p], [WO_RAW + 2 * p + 1]) for p in range(24)]
    WO_P, _ = pair_perm(wo_units, WO_SP, [46 - 2 * p for p in range(24)])
    stamp(3)
    first_pass("sb")
    A.label("L_sb_top")

    def sb_issue(b):
        for i in range(8):
            so = "s62" if i < 4 else "s63"
            A(f"buffer_load_dword v{b+i}, v{V_H1}, s[4:7], {so} offen offset:{(i%4)*1024} sc1")
    ppoll("L_h1", [32 + 8 * k for k in range(nsb or nsets)], 8, sb_issue, 8, lambda b: copyregs(16, b, 8))
    stamp(5)
    if diag:
        A("s_mov_b32 s84, s58")
        A("s_mov_b32 s85, 0")
    A("v_max3_f32 v12, v16, v17, v18")
    A("v_max3_f32 v13, v19, v20, v21")
    A("v_max3_f32 v12, v12, v22, v23")
    A("v_max_f32 v12, v12, v13")
    A("s_nop 1")
    A("v_mov_b32_dpp v12, v12 row_newbcast:12 row_mask:0xf bank_mask:0xf")
    A("s_nop 1")
    for i in range(8):
        A(f"v_sub_f32_dpp v{24+i}, v{16+i}, v12 row_newbcast:12 row_mask:0xf bank_mask:0xf")
    for i in range(8):
        A(f"v_mul_f32 v{24+i}, s69, v{24+i}")
    for i in range(8):
        A(f"v_exp_f32 v{24+i}, v{24+i}")
    A("s_nop 0")
    A("v_mul_f32 v13, v16, v24")
    A("v_mul_f32 v14, v20, v28")
    for i in range(1, 4):
        A(f"v_fmac_f32 v13, v{16+i}, v{24+i}")
        A(f"v_fmac_f32 v14, v{20+i}, v{28+i}")
    A("v_add_f32 v13, v13, v14")
    A("s_nop 1")
    A("v_mov_b32_dpp v14, v13 row_newbcast:13 row_mask:0xf bank_mask:0xf")
    A("v_rcp_f32 v14, v14")
    A("s_nop 0")
    A("v_mul_f32 v13, v13, v14")
    A("s_nop 1")
    A("v_mov_b32_dpp v14, v13 quad_perm:[1,0,3,2] row_mask:0xf bank_mask:0xf")
    A("v_cvt_pk_bf16_f32 v13, v13, v14")
    A("s_nop 0")

    def psg(p):
        return 16 + p if p < 16 else 8 + (p - 16)

    for p in range(24):
        lane = (p // 6) * 16 + 2 * (p % 6)
        A(f"v_readlane_b32 s{psg(p)}, v13, {lane}")
    A("v_mov_b32 v14, 0")
    A("v_mov_b32 v15, 0")
    A("v_mov_b32 v16, 0")
    A("v_mov_b32 v17, 0")
    for p in range(24):
        a = 14 + 2 * (p % 2)
        A(f"v_dot2c_f32_bf16 v{a}, s{psg(p)}, v{WO_P[p][0]}")
        A(f"v_dot2c_f32_bf16 v{a+1}, s{psg(p)}, v{WO_P[p][1]}")
    A("s_nop 1")
    A("v_add_f32 v14, v14, v16")
    A("v_add_f32 v15, v15, v17")
    A(f"ds_write_b64 v6, v[14:15] offset:{AP}")
    arrive("L_sb_next")
    for w in range(4):
        A(f"ds_read_b64 v[{16+2*w}:{17+2*w}], v7 offset:{AP+512*w}")
    A("s_waitcnt lgkmcnt(0)")
    A("v_add_f32 v16, v16, v18")
    A("v_add_f32 v17, v17, v19")
    A("v_add_f32 v20, v20, v22")
    A("v_add_f32 v21, v21, v23")
    A("v_add_f32 v16, v16, v20")
    A("v_add_f32 v17, v17, v21")
    A("s_cmp_eq_u32 s49, 0")
    A("s_cbranch_scc1 L_sb_next")
    A(f"buffer_store_dwordx2 v[16:17], v{V_B}, s[4:7], 0 offen sc1")
    stamp(6)
    if diag:
        A("s_waitcnt vmcnt(0)")
        stamp(9)
    next_pass("sb", "L_sb_top", False)

    A.label("L_gu")
    addr_gu("v6", "v13")
    if hrep == 24:
        A("s_mov_b32 s42, s48")
    elif leader:
        A("s_and_b32 s42, s48, 7")
    else:
        A("s_lshl_b32 s42, s48, 2")
        A("s_add_u32 s42, s42, s3")
        A("s_and_b32 s42, s42, 7")
    A(f"s_mul_i32 s42, s42, {H_STR}")
    A(f"s_add_u32 s42, s42, {W_H}")
    A("v_lshlrev_b32 v14, 4, v2")
    A("v_add_u32 v7, s42, v14")
    A("v_lshlrev_b32 v14, 2, v2")
    A("v_add_u32 v8, s42, v14")
    A("v_and_b32 v14, 7, v2")
    A("v_lshlrev_b32 v14, 3, v14")
    A("v_bfe_u32 v15, v2, 5, 1")
    A("v_lshl_add_u32 v14, v15, 2, v14")
    A("v_bfe_u32 v15, v2, 4, 1")
    A("v_lshl_add_u32 v14, v15, 1, v14")
    A("v_bfe_u32 v15, v2, 3, 1")
    A("v_add_u32 v14, v14, v15")
    A("s_lshl_b32 s42, s3, 9")
    A(f"s_add_u32 s42, s42, {GP}")
    A("v_lshlrev_b32 v14, 3, v14")
    A("v_add_u32 v9, s42, v14")
    A("v_lshrrev_b32 v14, 3, v2")
    A("s_mul_i32 s42, s3, 80")
    A("v_add_u32 v14, s42, v14")
    A("v_lshlrev_b32 v14, 2, v14")
    A(f"v_add_u32 v5, {HN}, v14")
    GU_SP, GU_RAW = 45, 46
    A("s_lshl_b32 s42, s48, 7")
    A("s_mul_i32 s43, s3, %d" % (160 * 3072))
    A("s_add_u32 s42, s42, s43")
    A("s_sub_u32 s43, %d, s42" % (640 * 3072))
    srd(8, 28, 29, "s42", "s43")
    srd(12, 30, 31, "s42", "s43")
    A("v_lshrrev_b32 v16, 3, v2")
    A("v_mul_u32_u24 v16, 6144, v16")
    A("v_and_b32 v13, 7, v2")
    A("v_lshl_add_u32 v16, v13, 4, v16")
    gu_all = [(m, ip) for m in range(2) for ip in range(10)]
    units = []
    for (m, ip) in gu_all:
        sr = 8 if m == 0 else 12
        r = GU_RAW + 80 * m + 8 * ip
        A(f"s_mov_b32 s42, {ip*49152}")
        if not nopf:
            A(f"buffer_load_dwordx4 v[{r}:{r+3}], v16, s[{sr}:{sr+3}], s42 offen nt")
            A(f"buffer_load_dwordx4 v[{r+4}:{r+7}], v16, s[{sr}:{sr+3}], s42 offen offset:3072 nt")
        units.append(([r + i for i in range(4)], [r + 4 + i for i in range(4)]))
    n = len(units)
    GU_P, sp = pair_perm(units, GU_SP, [2 * (n - 1 - k) for k in range(n)])
    stamp(3)
    first_pass("gu")
    A.label("L_gu_top")
    F2 = 22

    def gu_issue(b):
        A(f"buffer_load_dwordx4 v[{b}:{b+3}], v7, s[4:7], 0 offen sc1")
        A(f"buffer_load_dword v{b+4}, v8, s[4:7], 0 offen offset:1024 sc1")

    def gu_ok(b):
        for i in range(5):
            A(f"v_lshlrev_b32 v{F2+2*i}, 16, v{b+i}")
            A(f"v_and_b32 v{F2+2*i+1}, s51, v{b+i}")
    if leader:
        A("s_cmp_lg_u32 s3, 0")
        A("s_cbranch_scc1 L_gu_follow")
    ppoll("L_h3", [32, 38, 234, 240, 246][:(ngu or nsets)], 5, gu_issue, 2, gu_ok)
    stamp(7)
    if diag:
        A("s_mov_b32 s80, s58")
        A("s_mov_b32 s81, 0")
    ln_sums(F2, "v12", "v13")
    A(f"v_mul_f32 v12, {f32(1/640)}, v12")
    A(f"v_mul_f32 v13, {f32(1/640)}, v13")
    A("v_fma_f32 v13, -v12, v12, v13")
    A(f"v_add_f32 v13, {f32(1e-5)}, v13")
    A("v_rsq_f32 v13, v13")
    A("s_nop 0")
    A("v_mul_f32 v12, v12, v13")
    for i in range(5):
        A(f"v_fma_f32 v{F2+2*i}, v{F2+2*i}, v13, -v12")
        A(f"v_fma_f32 v{F2+2*i+1}, v{F2+2*i+1}, v13, -v12")
        A(f"v_cvt_pk_bf16_f32 v{16+i}, v{F2+2*i}, v{F2+2*i+1}")
    A("v_lshlrev_b32 v12, 4, v2")
    A("v_lshlrev_b32 v13, 2, v2")
    A(f"ds_write_b128 v12, v[16:19] offset:{HN}")
    A(f"ds_write_b32 v13, v20 offset:{HN+1024}")
    if leader:
        A(f"ds_write_b32 v11, v3 offset:{FL+24}")
        A("s_branch L_gu_hn")
        A.label("L_gu_follow")
        lds_wait("L_gu_fw", 24, 0)
        stamp(7)
        A.label("L_gu_hn")
    HNP = 224
    for k in range(5):
        A(f"ds_read2_b32 v[{HNP+2*k}:{HNP+2*k+1}], v5 offset0:{16*k} offset1:{16*k+8}")
    GA = 208
    for c in range(16):
        A(f"v_mov_b32 v{GA+c}, 0")
    for ip in range(10):
        if ip % 2 == 0:
            A(f"s_waitcnt lgkmcnt({4 - ip//2})")
        for m in range(2):
            for c in range(8):
                A(f"v_dot2c_f32_bf16 v{GA+8*m+c}, v{HNP+ip}, v{GU_P[10*m+ip][c]}")
    A("s_nop 2")
    for m in range(2):
        for c in range(4):
            A(f"v_permlane32_swap_b32 v{GA+8*m+c}, v{GA+8*m+c+4}")
    for m in range(2):
        for c in range(4):
            A(f"v_add_f32 v{GA+8*m+c}, v{GA+8*m+c}, v{GA+8*m+c+4}")
    for m in range(2):
        for c in range(2):
            A(f"v_permlane16_swap_b32 v{GA+8*m+c}, v{GA+8*m+c+2}")
    for m in range(2):
        for c in range(2):
            A(f"v_add_f32 v{GA+8*m+c}, v{GA+8*m+c}, v{GA+8*m+c+2}")
    A("s_nop 0")
    dpp_add("v16", f"v{GA}", "row_ror:8", "0x3")
    dpp_add("v17", f"v{GA+8}", "row_ror:8", "0x3")
    A("s_nop 0")
    dpp_add("v16", f"v{GA+1}", "row_ror:8", "0xc")
    dpp_add("v17", f"v{GA+9}", "row_ror:8", "0xc")
    A("ds_write_b64 v9, v[16:17]")
    A("v_lshlrev_b32 v13, 3, v2")
    arrive("L_gu_next")
    for w in range(4):
        A(f"ds_read_b64 v[{16+2*w}:{17+2*w}], v13 offset:{GP+512*w}")
    A("s_waitcnt lgkmcnt(0)")
    A("v_add_f32 v16, v16, v18")
    A("v_add_f32 v20, v20, v22")
    A("v_add_f32 v17, v17, v19")
    A("v_add_f32 v21, v21, v23")
    A("v_add_f32 v16, v16, v20")
    A("v_add_f32 v17, v17, v21")
    bf16r("v16", "v16")
    A("v_mul_f32 v18, 0xbfb8aa3b, v16")
    A("v_exp_f32 v18, v18")
    bf16r("v17", "v17")
    A("v_add_f32 v18, 1.0, v18")
    A("v_rcp_f32 v18, v18")
    A("s_nop 0")
    bf16r("v18", "v18")
    A("v_mul_f32 v18, v18, v17")
    A("s_nop 1")
    A("v_mov_b32_dpp v19, v18 quad_perm:[1,0,3,2] row_mask:0xf bank_mask:0xf")
    A("v_cvt_pk_bf16_f32 v18, v18, v19")
    A("s_nop 1")
    A("v_mov_b32_dpp v19, v18 quad_perm:[0,0,2,2] row_mask:0xf bank_mask:0xf")
    A("s_cmp_eq_u32 s49, 0")
    A("s_cbranch_scc1 L_gu_next")
    hp_stores("v19", "v6")
    stamp(8)
    if diag:
        A("s_waitcnt vmcnt(0)")
        stamp(9)
    next_pass("gu", "L_gu_top", True)

    A.label("L_dn")
    if hprep == 20:
        A("s_mov_b32 s42, s48")
    elif hprep == 10:
        A("s_lshr_b32 s42, s48, 1")
    else:
        A(f"s_and_b32 s42, s48, {hprep - 1}")
    A(f"s_mul_i32 s42, s42, {HP_STR}")
    A("s_mul_i32 s43, s3, 768")
    A("s_add_u32 s42, s42, s43")
    A(f"s_add_u32 s42, s42, {W_HP}")
    A("v_lshrrev_b32 v14, 2, v2")
    A("v_mul_u32_u24 v14, 48, v14")
    A("v_add_u32 v6, s42, v14")
    A("v_and_b32 v14, 3, v2")
    A("v_lshlrev_b32 v14, 3, v14")
    A("v_bfe_u32 v15, v2, 5, 1")
    A("v_lshl_add_u32 v14, v15, 2, v14")
    A("v_bfe_u32 v15, v2, 4, 1")
    A("v_lshl_add_u32 v14, v15, 1, v14")
    A("v_bfe_u32 v15, v2, 3, 1")
    A("v_add_u32 v14, v14, v15")
    A("s_lshl_b32 s42, s3, 7")
    A(f"s_add_u32 s42, s42, {GP}")
    A("v_lshlrev_b32 v14, 2, v14")
    A("v_add_u32 v7, s42, v14")
    A("s_and_b32 s42, s48, 7")
    if dnres:
        A(f"s_add_u32 s42, s42, {hrep}")
    A(f"s_mul_i32 s42, s42, {H_STR}")
    A("s_lshl_b32 s43, s48, 6")
    A("s_add_u32 s42, s42, s43")
    A(f"s_add_u32 s42, s42, {W_H}")
    A("v_bfe_u32 v14, v2, 1, 4")
    A("v_lshlrev_b32 v14, 2, v14")
    A("v_add_u32 v8, s42, v14")
    A("v_and_b32 v14, 1, v2")
    A("v_lshlrev_b32 v14, 4, v14")
    A("v_sub_u32 v9, 16, v14")
    DN_SP, DN_RAW = 47, 48
    A("s_lshl_b32 s42, s48, 6")
    A("s_mul_i32 s43, s3, %d" % (384 * 1280))
    A("s_add_u32 s42, s42, s43")
    A("s_sub_u32 s43, %d, s42" % (1536 * 1280))
    srd(8, 32, 33, "s42", "s43")
    A("v_lshrrev_b32 v16, 2, v2")
    A("v_mul_u32_u24 v16, %d, v16" % (24 * 1280))
    A("v_and_b32 v13, 3, v2")
    A("v_lshl_add_u32 v16, v13, 4, v16")
    units = []
    for ip in range(12):
        r = DN_RAW + 8 * ip
        A(f"s_mov_b32 s42, {ip*2560}")
        if not nopf:
            A(f"buffer_load_dwordx4 v[{r}:{r+3}], v16, s[8:11], s42 offen nt")
            A(f"buffer_load_dwordx4 v[{r+4}:{r+7}], v16, s[8:11], s42 offen offset:1280 nt")
        units.append(([r + i for i in range(4)], [r + 4 + i for i in range(4)]))
    n = len(units)
    DN_P, sp = pair_perm(units, DN_SP, [2 * (n - 1 - k) for k in range(n)])
    stamp(3)
    first_pass("dn")
    A.label("L_dn_top")

    def dn_issue(b):
        for k in range(3):
            A(f"buffer_load_dwordx4 v[{b+4*k}:{b+3+4*k}], v6, s[4:7], 0 offen offset:{16*k} sc1")
        A(f"buffer_load_dword v{b+12}, v8, s[4:7], 0 offen sc1")
    ppoll("L_h4", [144 + 16 * k for k in range(ndn or nsets)], 13, dn_issue, 4, lambda b: copyregs(16, b, 13))
    stamp(9)
    if diag:
        A("s_mov_b32 s80, s58")
        A("s_mov_b32 s81, 0")
    for c in range(8):
        A(f"v_mov_b32 v{32+c}, 0")
    for ip in range(12):
        for c in range(8):
            A(f"v_dot2c_f32_bf16 v{32+c}, v{16+ip}, v{DN_P[ip][c]}")
    A("v_lshlrev_b32 v28, v9, v28")
    A("v_and_b32 v28, s51, v28")
    A("s_nop 0")
    for c in range(4):
        A(f"v_permlane32_swap_b32 v{32+c}, v{36+c}")
    for c in range(4):
        A(f"v_add_f32 v{32+c}, v{32+c}, v{36+c}")
    A("s_nop 0")
    for c in range(2):
        A(f"v_permlane16_swap_b32 v{32+c}, v{34+c}")
    for c in range(2):
        A(f"v_add_f32 v{32+c}, v{32+c}, v{34+c}")
    A("s_nop 0")
    dpp_add("v34", "v32", "row_ror:8", "0x3")
    A("s_nop 1")
    dpp_add("v34", "v33", "row_ror:8", "0xc")
    A("s_nop 1")
    dpp_add("v35", "v34", "row_shl:4", "0x5")
    A("s_nop 1")
    dpp_add("v35", "v34", "row_shr:4", "0xa")
    A("ds_write_b32 v7, v35")
    A("v_and_b32 v13, 31, v2")
    A("v_lshlrev_b32 v13, 2, v13")
    arrive("L_dn_next")
    for w in range(4):
        A(f"ds_read_b32 v{16+w}, v13 offset:{GP+128*w}")
    srd(8, 34, 35, None, 1280)
    A("s_lshl_b32 s42, s48, 6")
    A("v_lshlrev_b32 v12, 1, v2")
    A("s_waitcnt lgkmcnt(0)")
    A("v_add_f32 v16, v16, v17")
    A("v_add_f32 v18, v18, v19")
    A("v_add_f32 v16, v16, v18")
    bf16r("v16", "v16")
    A("v_add_f32 v16, v16, v28")
    A("s_nop 1")
    A("v_mov_b32_dpp v17, v16 quad_perm:[1,0,3,2] row_mask:0xf bank_mask:0xf")
    A("v_cvt_pk_bf16_f32 v16, v16, v17")
    A("s_cmp_eq_u32 s49, 0")
    A("s_cbranch_scc1 L_dn_next")
    A("s_mov_b32 s44, 0x55555555")
    A("s_mov_b32 s45, 0")
    A("s_mov_b64 exec, s[44:45]")
    A(f"buffer_store_dword v16, v12, s[8:11], s42 offen {outfl}")
    A("s_mov_b64 exec, -1")
    stamp(10)
    if diag:
        A("s_waitcnt vmcnt(0)")
        stamp(8)
    A("s_cmp_lg_u32 s48, 0")
    A("s_cbranch_scc1 L_fin")
    A(f"v_mov_b32 v12, {W_EPOCH}")
    A("v_mov_b32 v13, s59")
    A("s_mov_b64 exec, 1")
    A("buffer_store_dword v13, v12, s[4:7], 0 offen sc1")
    A("s_mov_b64 exec, -1")
    A("s_branch L_fin")
    next_pass("dn", "L_dn_top", True)
    A.label("L_fin")
    if stamps:
        A("s_waitcnt vmcnt(0)")
        A("s_lshl_b32 s64, s2, 9")
        A("s_lshl_b32 s65, s3, 7")
        A("s_add_u32 s64, s64, s65")
        A(f"s_add_u32 s64, s64, {W_ST1}")
        A("v_mov_b32 v3, s64")
        A("s_mov_b64 exec, 1")
        for n in range(11):
            A(f"v_mov_b32 v4, s{70+2*n}")
            A(f"v_mov_b32 v5, s{71+2*n}")
            A(f"global_store_dwordx2 v3, v[4:5], s[38:39] offset:{8*n}")
            A("s_nop 1")
    A.label("L_end")
    A("s_endpgm")

    body_txt = "\n".join(A.L)
    out = [HDR.rstrip("\n"),
           "; Override launch geometry: 256 persistent workgroups (one per CU), 8 waves each.",
           f"; @launch grid=(256,1,1) block=(512,1,1) lds={LDS_BYTES}",
           '.amdgcn_target "amdgcn-amd-amdhsa--gfx950"',
           ".text", f".globl {KN}", ".p2align 8", f".type {KN},@function",
           body_txt,
           '.section .rodata,"a"', ".p2align 6", f".amdhsa_kernel {KN}",
           "  .amdhsa_next_free_vgpr 256", "  .amdhsa_next_free_sgpr 102", "  .amdhsa_accum_offset 256",
           "  .amdhsa_group_segment_fixed_size 0", "  .amdhsa_kernarg_size 96", "  .amdhsa_user_sgpr_count 2",
           "  .amdhsa_user_sgpr_kernarg_segment_ptr 1", "  .amdhsa_system_sgpr_workgroup_id_x 1",
           ".end_amdhsa_kernel", ""]
    return "\n".join(out)


if __name__ == "__main__":
    ap = argparse.ArgumentParser()
    ap.add_argument("-o", default="k5.s")
    ap.add_argument("--stamps", action="store_true")
    ap.add_argument("--pst", action="store_true")
    ap.add_argument("--noprio", action="store_true")
    ap.add_argument("--ns", type=int, default=27)
    ap.add_argument("--nopf", action="store_true")
    ap.add_argument("--nodry", action="store_true")
    ap.add_argument("--nomdry", action="store_true")
    ap.add_argument("--nsets", type=int, default=4)
    ap.add_argument("--stag", type=int, default=4)
    ap.add_argument("--stag0", type=int, default=5)
    ap.add_argument("--hrep", type=int, default=8)
    ap.add_argument("--hprep", type=int, default=4)
    ap.add_argument("--leader", action="store_true")
    ap.add_argument("--nodnres", action="store_true")
    ap.add_argument("--psleep", type=int, default=0)
    ap.add_argument("--diag", action="store_true")
    ap.add_argument("--half", type=int, default=0)
    ap.add_argument("--outfl", default="")
    for r in ("nsb", "nred", "ngu", "ndn"):
        ap.add_argument("--" + r, type=int, default=None)
    a = ap.parse_args()
    t = gen(stamps=a.stamps, pst=a.pst, prio=not a.noprio, NS=a.ns, nopf=a.nopf, dry=not a.nodry, mdry=not a.nomdry,
            nsets=a.nsets, stag=a.stag, stag0=a.stag0, hrep=a.hrep, hprep=a.hprep, leader=a.leader, psleep=a.psleep,
            dnres=not a.nodnres, half=a.half, diag=a.diag, outfl=a.outfl, nsb=a.nsb, nred=a.nred, ngu=a.ngu, ndn=a.ndn)
    open(a.o, "w").write(t)
    import hazard
    e = hazard.check(t)
    print(a.o, len(t), "bytes;", len(e), "hazards")
```

```python
import sys, argparse, struct

KN = "sequential_preLN__mha_block_cached__glu_gated_glu__decode_kernel"
REF = open('sequential_preLN__mha_block_cached__glu_gated_glu__decode.s.ref').read()
HDR = REF.split('; Override')[0]

HB = 32768 * 384
TILE = 32 * 384
STEP = 32 * TILE
NTILE = 1024
LOG2E = 0x3fb8aa3b
SCALE = 0x3d93cd3a

XF = 0
QP = 5120
PB = 11264
RC = 12288
AP = 16384
HN = 18432
GP = 19712
FL = 21760
GC = 21792
ST = GC + 2048
SV = ST + 32
DP = SV + 4096
DW = DP + 512
LDS_BYTES = DW + 98304
W_TK = 0x8000
W_EPOCH = 0xF000
W_QX = 0x10000
W_REC = 0x90000
W_PT = 0x110000
PT_STR = 0x14000
W_H = 0xE8000
H_STR = 0x580
W_HP = 0xF8000
HP_STR = 0xD00
W_SIZE = 0x160000
W_ST0 = 0x200000
W_ST1 = 0x210000
W_ST2 = 0x230000
SPIN = 20000


class E:
    def __init__(self):
        self.L = []

    def __call__(self, s):
        for x in s.split("\n"):
            x = x.strip()
            if x:
                self.L.append("  " + x)

    def label(self, n):
        self.L.append(n + ":")


def f32(x):
    return "0x%08x" % struct.unpack("<I", struct.pack("<f", x))[0]


def gen(stamps=False, pst=False, prio=True, NS=27, nopf=False, hprep=2, psleep=0, diag=False, outfl='', dnpair=True, ptrep=1, gdiag=False, fine=True, gfine=False, bal=False, allow_local=True, dnwait=True, dnsleep=0, redsleep=0, twice=False, dry=False):
    nsets = 1; stag = 0; stag0 = 0; mdry = False; nsb = ngu = ndn = None; half = 0; leader = False
    A = E()
    far = []

    def stamp(n):
        if stamps and not (pst and n >= 3):
            A(f"s_memrealtime s[{70+2*n}:{71+2*n}]")
            A("s_waitcnt lgkmcnt(0)")

    def pstamp(n):
        if stamps and pst:
            A(f"s_memrealtime s[{70+2*n}:{71+2*n}]")
            A("s_waitcnt lgkmcnt(0)")

    def bf16r(dst, src):
        A(f"v_cvt_pk_bf16_f32 {dst}, {src}, {src}")
        A(f"v_and_b32 {dst}, 0xffff0000, {dst}")

    def srd(n, lo, hi, add, nrec):
        if add is None:
            A(f"s_mov_b32 s{n}, s{lo}")
            A(f"s_mov_b32 s{n+1}, s{hi}")
        else:
            A(f"s_add_u32 s{n}, s{lo}, {add}")
            A(f"s_addc_u32 s{n+1}, s{hi}, 0")
        A(f"s_mov_b32 s{n+2}, {nrec}")
        A(f"s_mov_b32 s{n+3}, 0x20000")

    def dpp_add(dst, src, ctrl, bank="0xf"):
        A(f"v_add_f32_dpp {dst}, {src}, {src} {ctrl} row_mask:0xf bank_mask:{bank}")

    def rowsum16(v):
        for r in (8, 4, 2, 1):
            A("s_nop 1")
            dpp_add(v, v, f"row_ror:{r}")

    def poll_end(lab, vmax, sleep=0):
        A(f"v_cmp_eq_u32 vcc, -1, {vmax}")
        A(f"s_cbranch_vccz {lab}_ok")
        if sleep:
            A(f"s_sleep {sleep}")
        A("s_sub_u32 s58, s58, 1")
        A(f"s_cbranch_scc0 {lab}")
        A.label(f"{lab}_ok")

    def maxchain(dst, rs):
        rs = list(rs)
        A(f"v_max3_u32 {dst}, v{rs[0]}, v{rs[1]}, v{rs[2]}")
        rs = rs[3:]
        while len(rs) >= 2:
            A(f"v_max3_u32 {dst}, {dst}, v{rs[0]}, v{rs[1]}")
            rs = rs[2:]
        if rs:
            A(f"v_max_u32 {dst}, {dst}, v{rs[0]}")

    def pair_perm(units, spare, waits=None):
        out = []
        for k, (ar, br) in enumerate(units):
            if waits is not None and waits[k] is not None:
                A(f"s_waitcnt vmcnt({waits[k]})")
            o = []
            for a, b in zip(ar, br):
                A(f"v_perm_b32 v{spare}, v{b}, v{a}, s56")
                A(f"v_perm_b32 v{b}, v{b}, v{a}, s57")
                o += [spare, b]
                spare = a
            out.append(o)
        return out, spare

    def lds_wait(lab, off, sleep, spin=SPIN):
        A(f"s_mov_b32 s58, {spin}")
        A.label(lab)
        A(f"ds_read_b32 v12, v11 offset:{FL+off}")
        A("s_waitcnt lgkmcnt(0)")
        A("v_cmp_ne_u32 vcc, 0, v12")
        A(f"s_cbranch_vccnz {lab}_ok")
        if sleep:
            A(f"s_sleep {sleep}")
        A("s_sub_u32 s58, s58, 1")
        A(f"s_cbranch_scc0 {lab}")
        A.label(f"{lab}_ok")

    def xcc_add(dst):
        A(f"s_getreg_b32 s{dst}, hwreg(HW_REG_XCC_ID, 0, 4)")
        A(f"s_mul_i32 s43, s{dst}, s{dst}")
        A("s_lshl_b32 s43, s43, 15")
        A(f"s_lshl_b32 s{dst}, s{dst}, 6")
        A(f"s_add_u32 s{dst}, s{dst}, s43")
        A(f"s_add_u32 s{dst}, s{dst}, 1")

    def handshake(lab, local=False):
        A(f"s_mov_b32 s58, {SPIN}")
        A.label(lab)
        A("global_load_dword v13, v11, s[36:37] sc1")
        A("s_waitcnt vmcnt(0)")
        A("v_and_b32 v12, 63, v13")
        A("v_cmp_gt_u32 vcc, 32, v12")
        A(f"s_cbranch_vccz {lab}_ok")
        A("s_sleep 32")
        A("s_sub_u32 s58, s58, 1")
        A(f"s_cbranch_scc0 {lab}")
        A.label(f"{lab}_ok")
        if local:
            xcc_add(42)
            A("s_lshl_b32 s42, s42, 5")
            A("v_readfirstlane_b32 s43, v13")
            A("s_cmp_eq_u32 s42, s43")
            A(f"s_cselect_b32 s53, {1 if allow_local else 0}, 0")

    def signal():
        A("v_mov_b32 v13, s59")
        A("s_add_u32 s42, s53, 1")
        A("v_mov_b32 v14, s42")
        A("v_mov_b32 v12, 1")
        A("s_mov_b64 exec, 1")
        A(f"ds_write_b32 v11, v13 offset:{FL}")
        A(f"ds_write_b32 v11, v14 offset:{FL+16}")
        A(f"ds_add_u32 v11, v12 offset:{FL+28}")
        A("s_mov_b64 exec, -1")

    def ppoll(lab, sets, nreg, issue, nld, onok):
        n = len(sets)
        for k in range(n):
            issue(sets[k])
            if k < n - 1 and stag0:
                A(f"s_sleep {stag0}")
        A.label(lab)
        for k in range(n):
            A(f"s_waitcnt vmcnt({nld * (n - 1)})")
            maxchain("v14", range(sets[k], sets[k] + nreg))
            A("v_cmp_eq_u32 vcc, -1, v14")
            A(f"s_cbranch_vccnz {lab}_n{k}")
            onok(sets[k])
            A(f"s_branch {lab}_ok")
            A.label(f"{lab}_n{k}")
            if n == 1 and psleep:
                A(f"s_sleep {psleep}")
            issue(sets[k])
            if stag and n > 1:
                A(f"s_sleep {stag}")
        A("s_sub_u32 s58, s58, 1")
        A(f"s_cbranch_scc0 {lab}")
        A.label(f"{lab}_ok")

    def copyregs(dst, src, n):
        for i in range(n):
            A(f"v_mov_b32 v{dst+i}, v{src+i}")

    def arrive_issue():
        A("s_mov_b64 exec, 1")
        A(f"ds_add_rtn_u32 v12, v11, v3 offset:{FL+20}")
        A("s_mov_b64 exec, -1")

    def arrive_check(lab_notlast):
        A("v_readfirstlane_b32 s42, v12")
        A("s_cmp_lg_u32 s42, s47")
        A(f"s_cbranch_scc1 {lab_notlast}")

    def next_pass(role, top, hs):
        A.label(f"L_{role}_next")
        A("s_cmp_lg_u32 s49, 0")
        A("s_cbranch_scc1 L_fin")
        A.label(f"L_{role}_real")
        A("s_mov_b32 s49, 1")
        A("s_mov_b32 s47, 3")
        A("v_mov_b32 v3, 1")
        if role == "gu":
            for j in range(8):
                A(f"v_mov_b32 v{208+j}, 0")
        if hs:
            if role == "gu" and leader:
                A("s_cmp_lg_u32 s3, 0")
                A("s_cbranch_scc1 L_hs_gu_ok")
            handshake(f"L_hs_{role}", role == "gu")
            if role == "gu":
                signal()
        stamp(2)
        lds_wait(f"L_pw_{role}", 8, 2)
        if prio:
            A("s_setprio 3")
        stamp(4)
        A(f"s_mov_b32 s58, {SPIN}")
        A(f"s_branch {top}")

    def dn_index():
        A("s_add_u32 s54, s60, 8")
        A("s_cmp_lt_u32 s60, 12")
        A("s_cselect_b32 s54, s54, 0xffff")
        A("s_sub_u32 s42, s60, 24")
        A("s_cmp_ge_u32 s60, 24")
        A("s_cselect_b32 s54, s42, s54")
        A("s_cmp_eq_u32 s61, 0")
        A("s_cselect_b32 s54, s54, 0xffff")

    def first_pass(role):
        A("s_mov_b32 s49, 0")
        A("s_mov_b32 s58, 0")
        A("s_mov_b32 s47, 0")
        A("s_mov_b32 s53, 0")
        A("v_mov_b32 v3, 0")
        if not dry:
            A(f"s_branch L_{role}_real")

    def h_base():
        A(f"s_mul_i32 s42, s48, {H_STR}")
        A(f"s_add_u32 s42, s42, {W_H}")

    def pt_stores(r, addr):
        for k in range(ptrep):
            if k == 0:
                A(f"buffer_store_dwordx2 v[{r}:{r+1}], {addr}, s[4:7], 0 offen sc1")
            else:
                A(f"s_mov_b32 s42, {k * PT_STR}")
                A(f"buffer_store_dwordx2 v[{r}:{r+1}], {addr}, s[4:7], s42 offen sc1")

    def hp_stores(val, addr, fl="sc1"):
        for k in range(hprep // 2):
            if k == 0:
                A(f"buffer_store_dword {val}, {addr}, s[4:7], 0 offen {fl}")
            else:
                A(f"s_mov_b32 s42, {k * 2 * HP_STR}")
                A(f"buffer_store_dword {val}, {addr}, s[4:7], s42 offen {fl}")

    def by_locality(lab, emit):
        A("s_cmp_eq_u32 s53, 0")
        A(f"s_cbranch_scc1 {lab}_far")
        emit("")
        A.label(f"{lab}_done")
        far.append((lab, emit))

    def addr_sb(dst, t):
        A("s_lshl_b32 s42, s52, 5")
        A("s_lshl_b32 s43, s48, 14")
        A("s_add_u32 s42, s42, s43")
        A(f"s_add_u32 s42, s42, {W_PT}")
        A(f"v_lshrrev_b32 {dst}, 2, v2")
        A(f"v_lshlrev_b32 {dst}, 10, {dst}")
        A(f"v_and_b32 {t}, 3, v2")
        A(f"v_lshl_add_u32 {dst}, {t}, 3, {dst}")
        A(f"v_add_u32 {dst}, s42, {dst}")

    def addr_gu(dst, t):
        A(f"v_and_b32 {dst}, 1, v2")
        A(f"v_mul_u32_u24 {dst}, {HP_STR}, {dst}")
        A(f"v_lshrrev_b32 {t}, 1, v2")
        A(f"v_lshl_add_u32 {dst}, {t}, 2, {dst}")
        A("s_lshl_b32 s42, s48, 7")
        A(f"s_add_u32 s42, s42, {W_HP}")
        A(f"v_add_u32 {dst}, s42, {dst}")

    A.label(KN)
    A("s_cmp_ge_u32 s2, 256")
    A("s_cbranch_scc1 L_end")
    A("s_load_dwordx16 s[16:31], s[0:1], 0")
    A("s_load_dwordx8 s[32:39], s[0:1], 64")
    if stamps:
        A("s_memrealtime s[70:71]")
    A("v_lshrrev_b32 v1, 6, v0")
    A("v_and_b32 v2, 63, v0")
    A("s_lshr_b32 s60, s2, 3")
    A("v_readfirstlane_b32 s3, v1")
    A("s_and_b32 s61, s2, 7")
    A("s_cmp_ge_u32 s3, 4")
    A("s_cbranch_scc1 L_helper")

    VA, VB, VC = 3, 4, 5
    Q0 = 6
    VM, VL = 9, 10
    VQ = 11
    ACC = 12
    VPW, VPR, VFM = 18, 19, 20
    T0, T1, T2, T3 = 21, 22, 23, 24
    VT, VZ, VONE = 25, 26, 27
    S = 32
    P = 48
    KB, VBASE = 128, 192

    def kvload(base, i, srdn, soff):
        vo = (VA, VB, VC)[i // 6]
        off = (i % 6) * 768
        r = base + 4 * i
        A(f"buffer_load_dwordx3 v[{r}:{r+2}], v{vo}, s[{srdn}:{srdn+3}], {soff} offen offset:{off} nt")

    A("s_mul_i32 s62, s60, %d" % HB)
    A("s_lshl_b32 s63, s61, 2")
    A("s_add_u32 s63, s63, s3")
    A("s_mul_i32 s63, s63, %d" % TILE)
    A(f"v_mul_u32_u24 v{VA}, 12, v2")
    A(f"v_add_u32 v{VB}, 4608, v{VA}")
    A(f"v_add_u32 v{VC}, 9216, v{VA}")
    A("s_lshl_b32 s64, s60, 8")
    A(f"s_add_u32 s64, s64, {W_TK}")
    A("s_waitcnt lgkmcnt(0)")
    srd(4, 18, 19, "s62", HB)
    srd(8, 20, 21, "s62", HB)
    A("s_add_u32 s92, s38, s64")
    A("s_addc_u32 s93, s39, 0")
    A("s_barrier")
    for i in range(16):
        kvload(KB, i, 4, "s63")
    for i in range(16):
        kvload(VBASE, i, 8, "s63")
    A(f"v_bfe_u32 v{T0}, v2, 4, 1")
    A(f"v_bfe_u32 v{T1}, v2, 3, 1")
    A(f"v_lshl_add_u32 v{T0}, v{T1}, 1, v{T0}")
    A(f"v_bfe_u32 v{T1}, v2, 2, 1")
    A(f"v_lshl_add_u32 v{T0}, v{T1}, 2, v{T0}")
    A(f"v_bfe_u32 v{T1}, v2, 1, 1")
    A(f"v_lshl_add_u32 v{T0}, v{T1}, 3, v{T0}")
    A(f"v_lshlrev_b32 v{T0}, 3, v{T0}")
    A(f"v_and_b32 v{T1}, 1, v2")
    A(f"v_lshl_add_u32 v{T0}, v{T1}, 2, v{T0}")
    A(f"v_lshrrev_b32 v{T2}, 5, v2")
    A(f"v_lshlrev_b32 v{T2}, 7, v{T2}")
    A(f"s_lshl_b32 s64, s3, 8")
    A(f"s_add_u32 s64, s64, {PB}")
    A(f"v_add_u32 v{VPR}, s64, v{T2}")
    A(f"v_add_u32 v{VPW}, v{VPR}, v{T0}")
    A(f"v_mov_b32 v{T2}, 0xffff")
    A(f"v_mov_b32 v{T3}, 0xffff0000")
    A(f"v_cmp_eq_u32 vcc, 1, v{T1}")
    A("s_mov_b32 s66, 0xcccccccc")
    A("s_mov_b32 s67, 0xcccccccc")
    A(f"v_cndmask_b32 v{VFM}, v{T2}, v{T3}, vcc")
    A(f"v_mov_b32 v{VM}, 0xff800000")
    A(f"v_mov_b32 v{VL}, 0")
    for j in range(6):
        A(f"v_mov_b32 v{ACC+j}, 0")
    A(f"v_and_b32 v{VQ}, 31, v2")
    A(f"v_mul_u32_u24 v{VQ}, 24, v{VQ}")
    A(f"v_mov_b32 v{VZ}, 0")
    A(f"v_mov_b32 v{VONE}, 1")
    A(f"s_mov_b32 s65, {NS-2}")
    A("s_mov_b32 s50, 0")
    A(f"s_mov_b32 s68, {SCALE:#x}")
    A(f"s_mov_b32 s69, {LOG2E:#x}")
    A("s_barrier")
    stamp(1)
    for w in range(8):
        for j in range(3):
            A(f"ds_read_b64 v[{S+6*w+2*j}:{S+6*w+2*j+1}], v{VQ} offset:{QP + 768*w + 8*j}")
    A("s_waitcnt lgkmcnt(0)")
    for st in (1, 2, 4):
        for w in range(0, 8, 2 * st):
            for j in range(6):
                A(f"v_add_f32 v{S+6*w+j}, v{S+6*w+j}, v{S+6*(w+st)+j}")
    for j in range(3):
        A(f"v_cvt_pk_bf16_f32 v{Q0+j}, v{S+2*j}, v{S+2*j+1}")

    def body(W, tag):
        hi_so = "s96" if (tag == "d" and half) else "s63"
        for i in range(16):
            r = KB + 4 * i
            A(f"s_waitcnt vmcnt({W})")
            A(f"v_dot2_f32_bf16 v{S+i}, v{r}, v{Q0}, 0")
            A(f"v_dot2_f32_bf16 v{S+i}, v{r+1}, v{Q0+1}, v{S+i}")
            A(f"v_dot2_f32_bf16 v{S+i}, v{r+2}, v{Q0+2}, v{S+i}")
            kvload(KB, i, 4, "s63" if i < 8 else hi_so)
            if i % 2 == 1 and i >= 3:
                a = S + i - 3
                A(f"v_permlane16_swap_b32 v{a}, v{a+1}")
                A(f"v_add_f32 v{a}, v{a}, v{a+1}")
        A("s_nop 0")
        A(f"v_permlane16_swap_b32 v{S+14}, v{S+15}")
        A(f"v_add_f32 v{S+14}, v{S+14}, v{S+15}")
        for q in range(4):
            dpp_add(f"v{S+4*q}", f"v{S+4*q}", "row_ror:8", "0x3")
        for q in range(4):
            dpp_add(f"v{S+4*q}", f"v{S+4*q+2}", "row_ror:8", "0xc")
        A("s_nop 0")
        for r in range(2):
            dpp_add(f"v{S+8*r}", f"v{S+8*r}", "row_half_mirror", "0x5")
        A("s_nop 0")
        for r in range(2):
            dpp_add(f"v{S+8*r}", f"v{S+8*r+4}", "row_half_mirror", "0xa")
        A("s_nop 1")
        dpp_add(f"v{S+1}", f"v{S}", "quad_perm:[2,3,0,1]")
        dpp_add(f"v{S+2}", f"v{S+8}", "quad_perm:[2,3,0,1]")
        A(f"v_cndmask_b32 v{S}, v{S+1}, v{S+2}, s[66:67]")
        A("s_nop 1")
        dpp_add(f"v{T0}", f"v{S}", "quad_perm:[1,0,3,2]")
        bf16r(f"v{T0}", f"v{T0}")
        A(f"v_mul_f32 v{T0}, s68, v{T0}")
        bf16r(f"v{T0}", f"v{T0}")
        if tag == "d" and half:
            A(f"v_cndmask_b32 v{T0}, v{T0}, v28, s[98:99]")
        A("s_nop 1")
        A(f"v_max_f32_dpp v{T1}, v{T0}, v{T0} row_ror:8 row_mask:0xf bank_mask:0xf")
        A("s_nop 1")
        A(f"v_max_f32_dpp v{T1}, v{T1}, v{T1} row_ror:4 row_mask:0xf bank_mask:0xf")
        A("s_nop 1")
        A(f"v_max_f32_dpp v{T1}, v{T1}, v{T1} row_ror:2 row_mask:0xf bank_mask:0xf")
        A(f"v_mov_b32 v{T2}, v{T1}")
        A("s_nop 1")
        A(f"v_permlane16_swap_b32 v{T1}, v{T2}")
        A(f"v_max_f32 v{T1}, v{T1}, v{T2}")
        A(f"v_mov_b32 v{T2}, v{T1}")
        A("s_nop 1")
        A(f"v_permlane32_swap_b32 v{T1}, v{T2}")
        A(f"v_max_f32 v{T1}, v{T1}, v{T2}")
        A(f"v_cmp_gt_f32 vcc, v{T1}, v{VM}")
        A(f"s_cbranch_vccz L_nors{tag}")
        A(f"v_sub_f32 v{T2}, v{VM}, v{T1}")
        A(f"v_mul_f32 v{T2}, s69, v{T2}")
        A(f"v_exp_f32 v{T2}, v{T2}")
        A(f"v_mov_b32 v{VM}, v{T1}")
        for j in range(6):
            A(f"v_mul_f32 v{ACC+j}, v{ACC+j}, v{T2}")
        A(f"v_mul_f32 v{VL}, v{VL}, v{T2}")
        A.label(f"L_nors{tag}")
        A(f"v_sub_f32 v{T0}, v{T0}, v{VM}")
        A(f"v_mul_f32 v{T0}, s69, v{T0}")
        A(f"v_exp_f32 v{T0}, v{T0}")
        A("s_nop 0")
        A(f"v_cvt_pk_bf16_f32 v{T1}, v{T0}, v{T0}")
        A(f"v_add_f32 v{VL}, v{VL}, v{T0}")
        A(f"v_and_b32 v{T1}, v{T1}, v{VFM}")
        A(f"ds_write_b32 v{VPW}, v{T1}")
        for j in range(8):
            A(f"ds_read_b128 v[{P+4*j}:{P+4*j+3}], v{VPR} offset:{16*j}")
        for i in range(16):
            r = VBASE + 4 * i
            if i % 2 == 0:
                A(f"s_waitcnt vmcnt({W}) lgkmcnt({7 - i//2})")
            else:
                A(f"s_waitcnt vmcnt({W})")
            lo, hi = P + 2 * i, P + 2 * i + 1
            for j in range(3):
                A(f"v_dot2_f32_bf16 v{ACC+2*j}, v{r+j}, v{lo}, v{ACC+2*j}")
                A(f"v_dot2_f32_bf16 v{ACC+2*j+1}, v{r+j}, v{hi}, v{ACC+2*j+1}")
            kvload(VBASE, i, 8, "s63" if i < 8 else hi_so)

    A.label("L_loop")
    A(f"s_add_u32 s63, s63, {STEP}")
    body(31, "s")
    A("s_sub_u32 s65, s65, 1")
    A("s_cmp_lg_u32 s65, 0")
    A("s_cbranch_scc1 L_loop")
    A(f"s_add_u32 s63, s63, {STEP}")
    A("s_mov_b32 s94, 0")
    TK1 = NTILE - half
    TEND = TK1 + 2 * half
    if half:
        A("s_mov_b32 s96, s63")
        A("s_mov_b64 s[98:99], 0")
        A("s_mov_b32 s97, 0")
        A("v_mov_b32 v28, 0xff800000")
    A("s_branch L_dent")
    A.label("L_dtop")
    A("s_waitcnt vmcnt(32)")
    A(f"v_readfirstlane_b32 s94, v{VT}")
    A(f"s_add_u32 s94, s94, {NS*32}")
    A(f"s_min_u32 s94, s94, {TEND}")
    if half:
        A("s_cmp_lg_u32 s97, 0")
        A("s_cselect_b64 s[98:99], s[66:67], 0")
        A(f"s_add_u32 s95, s94, {TK1}")
        A(f"s_mul_i32 s95, s95, {TILE // 2}")
        A(f"s_mul_i32 s63, s94, {TILE}")
        A(f"s_cmp_ge_u32 s94, {TK1}")
        A("s_cselect_b32 s63, s95, s63")
        A(f"s_cselect_b32 s96, {HB}, s63")
        A("s_cselect_b32 s97, 1, 0")
    else:
        A(f"s_mul_i32 s63, s94, {TILE}")
    A.label("L_dent")
    A("s_mov_b64 exec, 1")
    A(f"global_atomic_add v{VT}, v{VZ}, v{VONE}, s[92:93] sc0")
    A("s_mov_b64 exec, -1")
    body(32, "d")
    A(f"s_cmp_lt_u32 s94, {TEND}")
    A("s_cbranch_scc1 L_dtop")
    stamp(2)
    A(f"v_mov_b32 v{T0}, v{VL}")
    A("s_nop 1")
    A(f"v_permlane32_swap_b32 v{VL}, v{T0}")
    A(f"v_add_f32 v{VL}, v{VL}, v{T0}")
    A(f"v_mov_b32 v{T0}, v{VL}")
    A("s_nop 1")
    A(f"v_permlane16_swap_b32 v{VL}, v{T0}")
    A(f"v_add_f32 v{VL}, v{VL}, v{T0}")
    rowsum16(f"v{VL}")
    A(f"v_mul_f32 v{VL}, 0.5, v{VL}")
    for j in range(3):
        A(f"v_permlane32_swap_b32 v{ACC+2*j}, v{ACC+2*j+1}")
    for j in range(3):
        A(f"v_add_f32 v{ACC+2*j}, v{ACC+2*j}, v{ACC+2*j+1}")
    A(f"v_lshrrev_b32 v{T1}, 5, v2")
    A(f"v_lshl_add_u32 v{T0}, v{T1}, 2, v{VQ}")
    A("s_lshl_b32 s64, s3, 10")
    A(f"s_add_u32 s64, s64, {RC}")
    A(f"v_add_u32 v{T0}, s64, v{T0}")
    for j in range(3):
        A(f"ds_write_b32 v{T0}, v{ACC+2*j} offset:{8*j}")
    A(f"v_mov_b32 v{T1}, s64")
    A(f"v_lshlrev_b32 v{T0}, 4, v2")
    A("s_mov_b64 exec, 1")
    A(f"ds_write_b32 v{T1}, v{VM} offset:768")
    A(f"ds_write_b32 v{T1}, v{VL} offset:772")
    A(f"ds_add_rtn_u32 v{T2}, v{VZ}, v{VONE} offset:{FL+4}")
    A("s_mov_b64 exec, -1")
    for w in range(4):
        A(f"ds_read_b64 v[{48+2*w}:{49+2*w}], v{VZ} offset:{RC+1024*w+768}")
    A("s_mov_b32 exec_hi, 0x1ffff")
    for w in range(4):
        A(f"ds_read_b128 v[{32+4*w}:{35+4*w}], v{T0} offset:{RC+1024*w}")
    A("s_lshl_b32 s64, s2, 10")
    A(f"s_add_u32 s64, s64, {W_REC}")
    A(f"v_add_u32 v{T3}, s64, v{T0}")
    srd(12, 38, 39, None, W_SIZE)
    A("v_cmp_eq_u32 vcc, 48, v2")
    A("s_waitcnt lgkmcnt(8)")
    A(f"v_readfirstlane_b32 s64, v{T2}")
    A("s_cmp_lg_u32 s64, 3")
    A("s_cbranch_scc1 L_sfin")
    A("s_waitcnt lgkmcnt(4)")
    A("v_max3_f32 v56, v48, v50, v52")
    A("v_max_f32 v56, v56, v54")
    for w in range(4):
        A(f"v_sub_f32 v{57+w}, v{48+2*w}, v56")
    for w in range(4):
        A(f"v_mul_f32 v{57+w}, s69, v{57+w}")
    for w in range(4):
        A(f"v_exp_f32 v{57+w}, v{57+w}")
    A("s_waitcnt lgkmcnt(0)")
    for j in range(4):
        A(f"v_mul_f32 v{64+j}, v{32+j}, v57")
    for w in range(1, 4):
        for j in range(4):
            A(f"v_fmac_f32 v{64+j}, v{32+4*w+j}, v{57+w}")
    A("v_cndmask_b32 v64, v64, v56, vcc")
    A(f"buffer_store_dwordx4 v[64:67], v{T3}, s[12:15], 0 offen sc1")
    A("s_mov_b64 exec, 1")
    A(f"ds_write_b32 v{VZ}, v{VONE} offset:{FL+8}")
    A("s_mov_b64 exec, -1")
    A.label("L_sfin")
    A("s_mov_b64 exec, -1")
    A("s_waitcnt lgkmcnt(0)")
    if stamps:
        stamp(3)
        A("s_cmp_lg_u32 s3, 0")
        A("s_cbranch_scc1 L_sfin2")
        A("s_lshl_b32 s64, s2, 7")
        A(f"s_add_u32 s64, s64, {W_ST0}")
        A("v_mov_b32 v3, s64")
        for n in range(3):
            A(f"v_mov_b32 v4, s{70+2*n}")
            A(f"v_mov_b32 v5, s{71+2*n}")
            A(f"global_store_dwordx2 v3, v[4:5], s[38:39] offset:{8*n}")
            A("s_nop 1")
        A.label("L_sfin2")
        for n in range(3, 11):
            A(f"s_mov_b32 s{70+2*n}, 0")
            A(f"s_mov_b32 s{71+2*n}, 0")
    A("s_cmp_eq_u32 s61, 0")
    A("s_cbranch_scc1 L_tail")
    A("s_endpgm")

    A.label("L_helper")
    if prio:
        A("s_setprio 3")
    A("s_sub_u32 s3, s3, 4")
    A(f"v_mov_b32 v23, {W_EPOCH}")
    A("s_cmp_eq_u32 s3, 3")
    A("s_cbranch_scc1 L_g3")
    EP = 60
    A("v_lshrrev_b32 v3, 3, v2")
    A("v_and_b32 v4, 7, v2")
    A("v_mul_u32_u24 v5, 12288, v3")
    A("v_lshl_add_u32 v5, v4, 4, v5")
    A("v_lshlrev_b32 v6, 4, v2")
    A("v_lshlrev_b32 v7, 2, v2")
    A("s_mul_i32 s62, s60, 384")
    A("s_lshl_b32 s63, s3, 7")
    A("s_add_u32 s62, s62, s63")
    A("s_mul_i32 s63, s61, %d" % (80 * 12288))
    A("s_sub_u32 s65, %d, s62" % (640 * 12288))
    A("s_waitcnt lgkmcnt(0)")
    srd(8, 16, 17, None, 1280)
    A("buffer_load_dwordx4 v[16:19], v6, s[8:11], 0 offen")
    A("buffer_load_dword v20, v7, s[8:11], 0 offen offset:1024")
    srd(12, 22, 23, "s62", "s65")
    WQ = 64
    for i in range(10):
        A(f"buffer_load_dwordx4 v[{WQ+4*i}:{WQ+4*i+3}], v5, s[12:15], s63 offen nt")
        if i < 9:
            A("s_add_u32 s63, s63, %d" % (8 * 12288))
    srd(4, 38, 39, None, W_SIZE)
    A(f"buffer_load_dword v{EP}, v23, s[4:7], 0 offen sc1")
    A("s_barrier")

    def ln_sums(F, a, b):
        A(f"v_add_f32 {a}, v{F}, v{F+1}")
        A(f"v_mul_f32 {b}, v{F}, v{F}")
        A(f"v_fmac_f32 {b}, v{F+1}, v{F+1}")
        for i in range(2, 10):
            A(f"v_add_f32 {a}, {a}, v{F+i}")
            A(f"v_fmac_f32 {b}, v{F+i}, v{F+i}")
        A("s_nop 1")
        A(f"v_permlane32_swap_b32 {a}, {b}")
        A(f"v_add_f32 {a}, {a}, {b}")
        A(f"v_mov_b32 {b}, {a}")
        A("s_nop 1")
        A(f"v_permlane16_swap_b32 {a}, {b}")
        A(f"v_add_f32 {a}, {a}, {b}")
        rowsum16(a)
        A(f"v_mov_b32 {b}, {a}")
        A("s_nop 1")
        A(f"v_permlane32_swap_b32 {a}, {b}")

    pstamp(3)
    A("s_waitcnt vmcnt(11)")
    pstamp(4)
    F = 21
    for i in range(5):
        A(f"v_lshlrev_b32 v{F+2*i}, 16, v{16+i}")
        A(f"v_and_b32 v{F+2*i+1}, 0xffff0000, v{16+i}")
    ln_sums(F, "v12", "v13")
    A(f"v_mul_f32 v12, {f32(1/640)}, v12")
    A(f"v_mul_f32 v13, {f32(1/640)}, v13")
    A("v_fma_f32 v13, -v12, v12, v13")
    bf16r("v12", "v12")
    bf16r("v13", "v13")
    A(f"v_add_f32 v13, {f32(1e-5)}, v13")
    bf16r("v13", "v13")
    A("v_sqrt_f32 v13, v13")
    A("s_nop 0")
    bf16r("v13", "v13")
    A("v_rcp_f32 v13, v13")
    for i in range(5):
        A(f"v_sub_f32 v{F+2*i}, v{F+2*i}, v12")
        A(f"v_sub_f32 v{F+2*i+1}, v{F+2*i+1}, v12")
        A(f"v_cvt_pk_bf16_f32 v{16+i}, v{F+2*i}, v{F+2*i+1}")
    for i in range(5):
        A(f"v_lshlrev_b32 v{F+2*i}, 16, v{16+i}")
        A(f"v_and_b32 v{F+2*i+1}, 0xffff0000, v{16+i}")
    for i in range(5):
        A(f"v_mul_f32 v{F+2*i}, v{F+2*i}, v13")
        A(f"v_mul_f32 v{F+2*i+1}, v{F+2*i+1}, v13")
        A(f"v_cvt_pk_bf16_f32 v{16+i}, v{F+2*i}, v{F+2*i+1}")
    for i in range(5):
        A(f"v_and_b32 v{32+4*i}, 0xffff, v{16+i}")
        A(f"v_lshlrev_b32 v{33+4*i}, 16, v{16+i}")
        A(f"v_lshrrev_b32 v{34+4*i}, 16, v{16+i}")
        A(f"v_and_b32 v{35+4*i}, 0xffff0000, v{16+i}")
    A("v_lshlrev_b32 v12, 6, v2")
    for i in range(4):
        A(f"ds_write_b128 v12, v[{32+4*i}:{35+4*i}] offset:{XF+16*i}")
    A(f"ds_write_b128 v6, v[48:51] offset:{XF+4096}")
    A("s_mul_i32 s64, s61, 640")
    A("v_lshlrev_b32 v12, 3, v3")
    A("v_add_u32 v12, s64, v12")
    for i in range(10):
        A(f"ds_read_b64 v[{32+2*i}:{33+2*i}], v12 offset:{XF+64*i}")
    for j in range(8):
        A(f"v_mov_b32 v{52+j}, 0")
    pstamp(5)
    for i in range(10):
        A(f"s_waitcnt vmcnt({10 - i}) lgkmcnt({0 if (stamps and pst) else 9-i})")
        for j in range(4):
            A(f"v_dot2c_f32_bf16 v{52+2*j}, v{WQ+4*i+j}, v{32+2*i}")
            A(f"v_dot2c_f32_bf16 v{53+2*j}, v{WQ+4*i+j}, v{33+2*i}")
    pstamp(6)
    A("v_bfe_u32 v12, v2, 5, 1")
    A("v_bfe_u32 v13, v2, 4, 1")
    A("v_lshl_add_u32 v12, v13, 1, v12")
    A("v_bfe_u32 v13, v2, 3, 1")
    for j in range(4):
        A(f"v_permlane32_swap_b32 v{52+2*j}, v{53+2*j}")
    A("v_lshl_add_u32 v12, v13, 2, v12")
    A("v_lshl_add_u32 v12, v4, 3, v12")
    for j in range(4):
        A(f"v_add_f32 v{52+2*j}, v{52+2*j}, v{53+2*j}")
    A("s_lshl_b32 s64, s2, 11")
    A("s_lshl_b32 s63, s3, 9")
    A("v_permlane16_swap_b32 v52, v54")
    A("v_permlane16_swap_b32 v56, v58")
    A("s_add_u32 s64, s64, s63")
    A(f"s_add_u32 s64, s64, {W_QX}")
    A("v_add_f32 v52, v52, v54")
    A("v_add_f32 v56, v56, v58")
    A("v_lshlrev_b32 v12, 3, v12")
    A("v_add_u32 v12, s64, v12")
    dpp_add("v14", "v52", "row_ror:8", "0x3")
    A("s_nop 1")
    dpp_add("v14", "v56", "row_ror:8", "0xc")
    A("s_waitcnt vmcnt(0)")
    A(f"v_add_u32 v15, 1, v{EP}")
    A("buffer_store_dwordx2 v[14:15], v12, s[4:7], 0 offen sc1")
    pstamp(7)
    A("s_branch L_gather")

    ROLE_PROG = """s_mul_i32 s42, s60, 3
        s_mov_b32 s43, 3
        s_mul_i32 s40, s60, 6
        s_sub_u32 s40, s40, 36
        s_cmp_ge_u32 s60, 12
        s_cselect_b32 s42, s40, s42
        s_cselect_b32 s43, 6, s43
        s_mul_i32 s40, s60, 5
        s_sub_u32 s40, s40, 16
        s_cmp_ge_u32 s60, 20
        s_cselect_b32 s42, s40, s42
        s_cselect_b32 s43, 5, s43
        s_mul_i32 s40, s60, 7
        s_sub_u32 s40, s40, 64
        s_cmp_ge_u32 s60, 24
        s_cselect_b32 s42, s40, s42
        s_cselect_b32 s43, 7, s43
        s_sub_u32 s40, s61, 1
        s_add_u32 s42, s42, s40
        s_mul_i32 s52, s42, 205
        s_lshr_b32 s52, s52, 10
        s_mul_i32 s48, s52, 5
        s_sub_u32 s48, s42, s48
        s_cmp_lt_u32 s40, s43
        s_cselect_b32 s41, 4, 0
        s_cmp_lt_u32 s60, 24
        s_cselect_b32 s42, 1, 0
        s_cmp_eq_u32 s61, 0
        s_cselect_b32 s41, s42, s41
        s_cselect_b32 s48, s60, s48"""

    def role_sgprs():
        for x in ROLE_PROG.split("\n"):
            A(x)
        dn_index()

    A.label("L_g3")
    role_sgprs()
    addr_sb("v5", "v13")
    addr_gu("v20", "v13")
    A("s_lshl_b32 s42, s2, 10")
    A(f"s_add_u32 s42, s42, {W_REC}")
    A("s_lshl_b32 s64, s60, 8")
    A(f"s_add_u32 s64, s64, {W_TK}")
    A("v_mov_b32 v21, s64")
    A("v_mov_b32 v22, 0")
    for i in range(4):
        A(f"v_mov_b32 v{24+i}, 0")
    A(f"ds_write_b128 v22, v[24:27] offset:{FL}")
    A(f"ds_write_b128 v22, v[24:27] offset:{FL+16}")
    A("v_lshlrev_b32 v16, 4, v2")
    A("v_add_u32 v16, s42, v16")
    for i in range(4):
        A(f"v_mov_b32 v{12+i}, -1")
    A("s_waitcnt lgkmcnt(0)")
    srd(4, 38, 39, None, W_SIZE)
    A(f"buffer_load_dword v{EP}, v23, s[4:7], 0 offen sc1")
    A("buffer_store_dwordx4 v[12:15], v16, s[4:7], 0 offen sc1")
    A("s_cmp_lg_u32 s61, 0")
    A("s_cbranch_scc1 L_notk")
    A("s_mov_b64 exec, 1")
    A("buffer_store_dword v22, v21, s[4:7], 0 offen sc1")
    A("s_mov_b64 exec, -1")
    A.label("L_notk")
    A("s_cmp_eq_u32 s41, 4")
    A("s_cbranch_scc0 L_clr_nsb")
    pt_stores(12, "v5")
    A("s_branch L_clr_done")
    A.label("L_clr_nsb")
    A("s_cmp_lg_u32 s61, 0")
    A("s_cbranch_scc1 L_clr_done")
    A("v_lshlrev_b32 v8, 9, v2")
    A("s_lshl_b32 s42, s60, 4")
    A(f"s_add_u32 s42, s42, {W_H}")
    A("s_cmp_lt_u32 s60, 16")
    A("s_cselect_b32 s43, 7, 3")
    A("s_mov_b32 exec_hi, 0")
    A("s_mov_b32 exec_lo, s43")
    A("buffer_store_dwordx4 v[12:15], v8, s[4:7], s42 offen sc1")
    A("s_mov_b64 exec, -1")
    A("s_cmp_eq_u32 s41, 1")
    A("s_cbranch_scc0 L_clr_done")
    hp_stores("v12", "v20")
    A.label("L_clr_done")
    A("s_barrier")
    A("s_lshl_b32 s64, s2, 11")
    A(f"s_add_u32 s64, s64, {W_QX + 1536}")
    A("v_mov_b32 v12, s64")
    A("s_waitcnt vmcnt(0)")
    A(f"v_add_u32 v15, 1, v{EP}")
    A("v_mov_b32 v14, 0")
    A("s_mov_b64 exec, 1")
    A("buffer_store_dwordx2 v[14:15], v12, s[4:7], 0 offen sc1")
    A("s_mov_b64 exec, -1")
    A.label("L_gather")
    A("s_lshl_b32 s62, s3, 1")
    A("s_lshl_b32 s63, s60, 3")
    A("s_add_u32 s63, s63, s62")
    A("s_lshl_b32 s63, s63, 11")
    A(f"s_add_u32 s63, s63, {W_QX}")
    A("s_mul_i32 s64, s62, 768")
    A(f"s_add_u32 s64, s64, {QP}")
    A("v_lshlrev_b32 v32, 4, v2")
    A("v_add_u32 v32, s63, v32")
    A("v_cmp_gt_u32 vcc, 32, v2")
    A("v_add_u32 v33, 1024, v32")
    A(f"v_add_u32 v34, {2048 - 512}, v32")
    A("v_cndmask_b32 v33, v34, v33, vcc")
    A(f"v_add_u32 v34, {2048 + 512}, v32")
    A("v_lshlrev_b32 v35, 3, v2")
    A("v_add_u32 v35, s64, v35")
    A("v_add_u32 v36, 512, v35")
    A(f"v_add_u32 v37, {768 - 256}, v35")
    A("v_cndmask_b32 v36, v37, v36, vcc")
    A(f"v_add_u32 v37, {768 + 256}, v35")
    A("v_lshrrev_b32 v38, 5, v2")
    A("v_lshlrev_b32 v38, 11, v38")
    A(f"s_add_u32 s64, s63, 1540")
    A("v_add_u32 v38, s64, v38")
    A(f"v_add_u32 v15, 1, v{EP}")
    A(f"s_mov_b32 s58, {SPIN}")
    A.label("L_qx")
    for i in range(3):
        A(f"buffer_load_dwordx4 v[{40+4*i}:{43+4*i}], v{32+i}, s[4:7], 0 offen sc1")
    A("buffer_load_dword v39, v38, s[4:7], 0 offen sc1")
    A("s_waitcnt vmcnt(0)")
    A("v_xor_b32 v52, v41, v15")
    A("v_xor_b32 v53, v43, v15")
    A("v_xor_b32 v54, v45, v15")
    A("v_xor_b32 v55, v47, v15")
    A("v_xor_b32 v56, v49, v15")
    A("v_xor_b32 v57, v51, v15")
    A("v_xor_b32 v58, v39, v15")
    A("v_or3_b32 v52, v52, v53, v54")
    A("v_or3_b32 v55, v55, v56, v57")
    A("v_or3_b32 v52, v52, v55, v58")
    A("v_cmp_ne_u32 vcc, 0, v52")
    A("s_cbranch_vccz L_qx_ok")
    A("s_sub_u32 s58, s58, 1")
    A("s_cbranch_scc0 L_qx")
    A.label("L_qx_ok")
    for i in range(3):
        A(f"ds_write2_b32 v{35+i}, v{40+4*i}, v{42+4*i} offset0:0 offset1:1")
    A("v_readfirstlane_b32 s59, v15")
    A("s_waitcnt lgkmcnt(0)")
    pstamp(8)
    A("s_barrier")
    if prio:
        A("s_setprio 0")
    stamp(1)

    if stamps:
        for n in range(2, 11):
            A(f"s_mov_b32 s{70+2*n}, 0")
            A(f"s_mov_b32 s{71+2*n}, 0")
    A("v_mov_b32 v11, 0")
    A("s_mov_b32 s56, 0x05040100")
    A("s_mov_b32 s57, 0x07060302")
    A("s_mov_b32 s51, 0xffff0000")
    A(f"s_mov_b32 s69, {LOG2E:#x}")
    A("s_cmp_eq_u32 s3, 3")
    A("s_cbranch_scc1 L_pub")
    role_sgprs()
    if mdry:
        A("s_cmp_lg_u32 s3, 0")
        A("s_cbranch_scc1 L_disp")
        A("s_mov_b32 s50, 1")
        A(f"v_lshlrev_b32 v{T0}, 4, v2")
        A(f"v_mov_b32 v{T3}, 0")
        A(f"v_mov_b32 v{VZ}, 0")
        A(f"v_mov_b32 v{VONE}, 1")
        A("s_branch L_merge")
    A("s_branch L_disp")
    A.label("L_pub")
    A("s_cmp_lg_u32 s61, 0")
    A("s_cbranch_scc1 L_disp")
    xcc_add(42)
    A("v_mov_b32 v13, s42")
    A("s_mov_b64 exec, 1")
    A("global_atomic_add v11, v13, s[36:37]")
    A("s_mov_b64 exec, -1")
    A.label("L_disp")
    A("s_cmp_eq_u32 s41, 4")
    A("s_cbranch_scc1 L_sb")
    A("s_cmp_eq_u32 s54, 0xffff")
    A("s_cbranch_scc1 L_disp2")
    DN_RAW, DN_OUT = 48, 144
    A("s_lshl_b32 s42, s54, 6")
    A("s_mul_i32 s43, s3, %d" % (384 * 1280))
    A("s_add_u32 s42, s42, s43")
    A("s_sub_u32 s43, %d, s42" % (1536 * 1280))
    srd(8, 32, 33, "s42", "s43")
    A("v_lshrrev_b32 v16, 2, v2")
    A("v_mul_u32_u24 v16, %d, v16" % (24 * 1280))
    A("v_and_b32 v13, 3, v2")
    A("v_lshl_add_u32 v16, v13, 4, v16")
    for ip in range(12):
        r = DN_RAW + 8 * ip
        A(f"s_mov_b32 s42, {ip*2560}")
        if not nopf:
            A(f"buffer_load_dwordx4 v[{r}:{r+3}], v16, s[8:11], s42 offen nt")
            A(f"buffer_load_dwordx4 v[{r+4}:{r+7}], v16, s[8:11], s42 offen offset:1280 nt")
    A("s_mul_i32 s42, s3, 24576")
    A(f"s_add_u32 s42, s42, {DW}")
    A("v_lshl_add_u32 v17, v2, 4, s42")
    for ip in range(12):
        r = DN_RAW + 8 * ip
        A(f"s_waitcnt vmcnt({2 * (11 - ip)})")
        for i in range(4):
            A(f"v_perm_b32 v{DN_OUT+8*ip+2*i}, v{r+4+i}, v{r+i}, s56")
            A(f"v_perm_b32 v{DN_OUT+8*ip+2*i+1}, v{r+4+i}, v{r+i}, s57")
        for j in range(2):
            A(f"ds_write_b128 v17, v[{DN_OUT+8*ip+4*j}:{DN_OUT+8*ip+4*j+3}] offset:{1024*(2*ip+j)}")
    A.label("L_disp2")
    if dry:
        A("s_cmp_lg_u32 s61, 0")
        A("s_cbranch_scc1 L_disp3")
        A("s_mov_b32 s49, 0")
        A("s_mov_b32 s46, 0")
        A("s_mov_b32 s47, 0")
        A("s_mov_b32 s53, 0")
        A("s_mov_b32 s55, 0")
        A("v_mov_b32 v3, 0")
        A("v_mov_b32 v23, 0")
        A("v_mov_b32 v22, 0")
        A("s_branch L_red")
        A.label("L_disp3")
    A("s_cmp_eq_u32 s41, 1")
    A("s_cbranch_scc1 L_gu")
    A("s_cmp_lg_u32 s61, 0")
    A("s_cbranch_scc1 L_fin")
    handshake("L_hs_dn", True)
    signal()
    stamp(3)
    A("s_branch L_fin")

    A.label("L_sb")
    V_H1, V_B = 4, 5
    WO_SP, WO_RAW = 207, 208
    addr_sb(f"v{V_B}", "v13")
    A("v_and_b32 v12, 15, v2")
    A("v_lshrrev_b32 v13, 4, v2")
    A("v_mul_u32_u24 v13, 12, v13")
    A("s_mul_i32 s42, s3, 48")
    A("v_add3_u32 v13, v13, v12, s42")
    A("v_min_u32 v14, 13, v12")
    A("v_add_u32 v14, 180, v14")
    A("v_cmp_gt_u32 vcc, 12, v12")
    A("s_nop 1")
    A("v_cndmask_b32 v13, v14, v13, vcc")
    A(f"v_lshlrev_b32 v{V_H1}, 2, v13")
    A("s_mul_i32 s42, s52, 192")
    A("s_mul_i32 s43, s3, 48")
    A("s_add_u32 s42, s42, s43")
    A("s_mul_i32 s42, s42, 1280")
    A("s_lshl_b32 s43, s48, 8")
    A("s_add_u32 s42, s42, s43")
    A("s_sub_u32 s43, %d, s42" % (6144 * 1280))
    srd(8, 24, 25, "s42", "s43")
    A("v_lshlrev_b32 v16, 2, v2")
    A("s_lshl_b32 s42, s52, 13")
    A(f"s_add_u32 s62, s42, {W_REC}")
    A("s_add_u32 s63, s62, 4096")
    A("v_lshlrev_b32 v7, 3, v2")
    A("s_lshl_b32 s42, s3, 9")
    A("v_add_u32 v6, s42, v7")
    if not nopf:
        for r in range(48):
            if r % 3 == 0:
                A(f"s_mov_b32 s42, {(r//3)*3840}")
            A(f"buffer_load_dword v{WO_RAW+r}, v16, s[8:11], s42 offen offset:{(r%3)*1280} nt")
    wo_units = [([WO_RAW + 2 * p], [WO_RAW + 2 * p + 1]) for p in range(24)]
    WO_P, _ = pair_perm(wo_units, WO_SP, [46 - 2 * p for p in range(24)])
    stamp(3)
    first_pass("sb")
    A.label("L_sb_top")

    def sb_issue(b):
        for i in range(8):
            so = "s62" if i < 4 else "s63"
            A(f"buffer_load_dword v{b+i}, v{V_H1}, s[4:7], {so} offen offset:{(i%4)*1024} sc1")
    ppoll("L_h1", [32 + 8 * k for k in range(nsb or nsets)], 8, sb_issue, 8, lambda b: copyregs(16, b, 8))
    stamp(5)
    if diag:
        A("s_mov_b32 s84, s58")
        A("s_mov_b32 s85, 0")
    A("v_max3_f32 v12, v16, v17, v18")
    A("v_max3_f32 v13, v19, v20, v21")
    A("v_max3_f32 v12, v12, v22, v23")
    A("v_max_f32 v12, v12, v13")
    A("s_nop 1")
    A("v_mov_b32_dpp v12, v12 row_newbcast:12 row_mask:0xf bank_mask:0xf")
    A("s_nop 1")
    for i in range(8):
        A(f"v_sub_f32_dpp v{24+i}, v{16+i}, v12 row_newbcast:12 row_mask:0xf bank_mask:0xf")
    for i in range(8):
        A(f"v_mul_f32 v{24+i}, s69, v{24+i}")
    for i in range(8):
        A(f"v_exp_f32 v{24+i}, v{24+i}")
    A("s_nop 0")
    A("v_mul_f32 v13, v16, v24")
    A("v_mul_f32 v14, v20, v28")
    for i in range(1, 4):
        A(f"v_fmac_f32 v13, v{16+i}, v{24+i}")
        A(f"v_fmac_f32 v14, v{20+i}, v{28+i}")
    A("v_add_f32 v13, v13, v14")
    A("s_nop 1")
    A("v_mov_b32_dpp v14, v13 row_newbcast:13 row_mask:0xf bank_mask:0xf")
    A("v_rcp_f32 v14, v14")
    A("s_nop 0")
    A("v_mul_f32 v13, v13, v14")
    A("s_nop 1")
    A("v_mov_b32_dpp v14, v13 quad_perm:[1,0,3,2] row_mask:0xf bank_mask:0xf")
    A("v_cvt_pk_bf16_f32 v13, v13, v14")
    A("s_nop 0")

    def psg(p):
        return 16 + p if p < 16 else 8 + (p - 16)

    for p in range(24):
        lane = (p // 6) * 16 + 2 * (p % 6)
        A(f"v_readlane_b32 s{psg(p)}, v13, {lane}")
    A("v_mov_b32 v14, 0")
    A("v_mov_b32 v15, 0")
    A("v_mov_b32 v16, 0")
    A("v_mov_b32 v17, 0")
    for p in range(24):
        a = 14 + 2 * (p % 2)
        A(f"v_dot2c_f32_bf16 v{a}, s{psg(p)}, v{WO_P[p][0]}")
        A(f"v_dot2c_f32_bf16 v{a+1}, s{psg(p)}, v{WO_P[p][1]}")
    A("s_nop 1")
    A("v_add_f32 v14, v14, v16")
    A("v_add_f32 v15, v15, v17")
    A(f"ds_write_b64 v6, v[14:15] offset:{AP}")
    arrive_issue()
    for w in range(4):
        A(f"ds_read_b64 v[{16+2*w}:{17+2*w}], v7 offset:{AP+512*w}")
    A("s_waitcnt lgkmcnt(0)")
    arrive_check("L_sb_next")
    A("v_add_f32 v16, v16, v18")
    A("v_add_f32 v17, v17, v19")
    A("v_add_f32 v20, v20, v22")
    A("v_add_f32 v21, v21, v23")
    A("v_add_f32 v16, v16, v20")
    A("v_add_f32 v17, v17, v21")
    A("s_cmp_eq_u32 s49, 0")
    A("s_cbranch_scc1 L_sb_next")
    pt_stores(16, f"v{V_B}")
    stamp(6)
    if diag:
        A("s_waitcnt vmcnt(0)")
        stamp(9)
    next_pass("sb", "L_sb_top", True)

    A.label("L_gu")
    addr_gu("v6", "v13")
    A("v_lshrrev_b32 v14, 4, v2")
    A("v_and_b32 v15, 15, v2")
    A("v_mul_u32_u24 v4, 80, v14")
    A("s_mul_i32 s42, s3, 320")
    A(f"s_add_u32 s42, s42, {W_H}")
    A("v_add_u32 v4, s42, v4")
    A("v_and_b32 v13, 3, v2")
    A("v_lshl_add_u32 v5, v13, 2, v4")
    A("v_add_u32 v5, 64, v5")
    A("v_lshl_add_u32 v4, v15, 2, v4")
    A("v_lshl_add_u32 v13, v15, 2, v14")
    A("s_lshl_b32 s42, s3, 9")
    A(f"s_add_u32 s42, s42, {GP}")
    A("v_lshl_add_u32 v9, v13, 3, s42")
    GU_SP, GU_RAW = 45, 46
    A("s_lshl_b32 s42, s48, 7")
    A("s_mul_i32 s43, s3, %d" % (160 * 3072))
    A("s_add_u32 s42, s42, s43")
    A("s_sub_u32 s43, %d, s42" % (640 * 3072))
    srd(8, 28, 29, "s42", "s43")
    srd(12, 30, 31, "s42", "s43")
    A("v_mul_u32_u24 v16, %d, v14" % (40 * 3072))
    A("v_lshl_add_u32 v16, v15, 3, v16")
    units = []
    for ip in range(20):
        A(f"s_mov_b32 s42, {ip*6144}")
        for m in range(2):
            sr = 8 if m == 0 else 12
            r = GU_RAW + 8 * ip + 4 * m
            if not nopf:
                A(f"buffer_load_dwordx2 v[{r}:{r+1}], v16, s[{sr}:{sr+3}], s42 offen nt")
                A(f"buffer_load_dwordx2 v[{r+2}:{r+3}], v16, s[{sr}:{sr+3}], s42 offen offset:3072 nt")
            units.append(([r, r + 1], [r + 2, r + 3]))
    n = len(units)
    GU_Pl, sp = pair_perm(units, GU_SP, [min(63, 2 * (n - 1 - k)) for k in range(n)])
    GU_P = [[GU_Pl[2 * ip + m] for m in range(2)] for ip in range(20)]
    GA = 208

    def gu_reduce(filler):
        filler = list(filler)

        def fill(k):
            for _ in range(k):
                A(filler.pop(0) if filler else "s_nop 0")
        fill(1)
        A("s_nop 1")
        for m in range(2):
            for c in range(2):
                A(f"v_permlane32_swap_b32 v{GA+4*m+c}, v{GA+4*m+c+2}")
        for m in range(2):
            for c in range(2):
                A(f"v_add_f32 v{GA+4*m+c}, v{GA+4*m+c}, v{GA+4*m+c+2}")
        A("s_nop 0")
        for m in range(2):
            A(f"v_permlane16_swap_b32 v{GA+4*m}, v{GA+4*m+1}")
        A("s_nop 0")
        for m in range(2):
            A(f"v_add_f32 v{16+m}, v{GA+4*m}, v{GA+4*m+1}")
        for x in filler:
            A(x)

    A("s_mov_b32 s46, 0x3f803f80")
    A(f"v_mov_b32 v17, s46")
    for ip in range(20):
        for m in range(2):
            for c in range(4):
                if ip == 0:
                    A(f"v_dot2_f32_bf16 v{GA+4*m+c}, v17, v{GU_P[ip][m][c]}, 0")
                else:
                    A(f"v_dot2c_f32_bf16 v{GA+4*m+c}, v17, v{GU_P[ip][m][c]}")
    gu_reduce([])
    A(f"ds_write_b64 v9, v[16:17] offset:{GC-GP}")
    A("v_mov_b32 v26, s46")
    A("v_mov_b32 v27, 0x3e803e80")
    A("v_lshrrev_b32 v24, 5, v2")
    A("s_lshl_b32 s42, s3, 3")
    A("v_lshl_add_u32 v24, v24, 2, s42")
    A("v_lshlrev_b32 v25, 3, v2")
    stamp(3)
    first_pass("gu")
    A.label("L_gu_top")
    HR1, HR2 = 32, 33
    A.label("L_h3")
    A(f"buffer_load_dword v{HR1}, v4, s[4:7], 0 offen sc1")
    A(f"buffer_load_dword v{HR2}, v5, s[4:7], 0 offen sc1")
    A("s_waitcnt vmcnt(0)")
    A(f"v_max_u32 v12, v{HR1}, v{HR2}")
    A("v_cmp_eq_u32 vcc, -1, v12")
    A("s_cbranch_vccz L_h3_ok")
    if psleep:
        A(f"s_sleep {psleep}")
    A("s_sub_u32 s58, s58, 1")
    A("s_cbranch_scc0 L_h3")
    A.label("L_h3_ok")
    stamp(7)
    pre = [f"v_dot2_f32_bf16 v18, v{HR1}, v26, 0", f"v_dot2_f32_bf16 v20, v{HR2}, v{HR2}, 0",
           f"v_dot2_f32_bf16 v19, v{HR1}, v{HR1}, 0", f"v_dot2_f32_bf16 v18, v{HR2}, v27, v18"]
    red = pre + [None, "v_fmac_f32 v19, 0x3e800000, v20", None, "v_permlane32_swap_b32 v18, v19", "v_add_f32 v18, v18, v19", "v_mov_b32 v19, v18", None,
                 "v_permlane16_swap_b32 v18, v19", "v_add_f32 v18, v18, v19", None]
    for r in (8, 4, 2, 1):
        red += [f"v_add_f32_dpp v18, v18, v18 row_ror:{r} row_mask:0xf bank_mask:0xf", None]
    cnt = 0
    if twice:
        A("s_mov_b32 s45, 2")
        A.label("L_twice")
        A("s_mov_b32 s88, s82")
        A("s_mov_b32 s89, s83")
    for ip in range(20):
        src = HR1 if ip < 16 else HR2
        for m in range(2):
            for c in range(4):
                A(f"v_dot2c_f32_bf16_dpp v{GA+4*m+c}, v{src}, v{GU_P[ip][m][c]} row_newbcast:{ip % 16} row_mask:0xf bank_mask:0xf")
                cnt += 1
                if cnt % 3 == 0 and red:
                    x = red.pop(0)
                    if x:
                        A(x)
    assert not red
    if gfine:
        stamp(6)
    if twice:
        A("s_sub_u32 s45, s45, 1")
        A("s_cmp_lg_u32 s45, 0")
        A("s_cbranch_scc1 L_twice")
    gu_reduce([])
    A("s_mov_b32 exec_lo, 1")
    A("s_mov_b32 exec_hi, 1")
    A(f"ds_write_b32 v24, v18 offset:{ST}")
    A("s_mov_b64 exec, -1")
    if gfine and not twice:
        stamp(9)
    A("ds_write_b64 v9, v[16:17]")
    arrive_issue()
    A(f"ds_read_b128 v[28:31], v11 offset:{ST}")
    A(f"ds_read_b128 v[36:39], v11 offset:{ST+16}")
    for w in range(4):
        A(f"ds_read_b64 v[{16+2*w}:{17+2*w}], v25 offset:{GP+512*w}")
    for w in range(4):
        A(f"ds_read_b64 v[{208+2*w}:{209+2*w}], v25 offset:{GC+512*w}")
    A("s_waitcnt lgkmcnt(8)")
    arrive_check("L_gu_next")
    if gfine:
        stamp(10)
    A("v_pk_add_f32 v[28:29], v[28:29], v[30:31]")
    A("v_pk_add_f32 v[36:37], v[36:37], v[38:39]")
    A("v_pk_add_f32 v[28:29], v[28:29], v[36:37]")
    A(f"v_mul_f32 v28, {f32(1/640)}, v28")
    A(f"v_mul_f32 v29, {f32(1/640)}, v29")
    A("v_fma_f32 v29, -v28, v28, v29")
    A(f"v_add_f32 v29, {f32(1e-5)}, v29")
    A("v_rsq_f32 v29, v29")
    A("s_waitcnt lgkmcnt(0)")
    A("v_pk_add_f32 v[16:17], v[16:17], v[18:19]")
    A("v_pk_add_f32 v[20:21], v[20:21], v[22:23]")
    A("v_pk_add_f32 v[208:209], v[208:209], v[210:211]")
    A("v_pk_add_f32 v[212:213], v[212:213], v[214:215]")
    A("v_pk_add_f32 v[16:17], v[16:17], v[20:21]")
    A("v_pk_add_f32 v[208:209], v[208:209], v[212:213]")
    A("v_fma_f32 v16, -v28, v208, v16")
    A("v_fma_f32 v17, -v28, v209, v17")
    A("v_mul_f32 v16, v16, v29")
    A("v_mul_f32 v17, v17, v29")
    bf16r("v16", "v16")
    A("v_mul_f32 v18, 0xbfb8aa3b, v16")
    A("v_exp_f32 v18, v18")
    bf16r("v17", "v17")
    A("v_add_f32 v18, 1.0, v18")
    A("v_rcp_f32 v18, v18")
    A("s_nop 0")
    bf16r("v18", "v18")
    A("v_mul_f32 v18, v18, v17")
    A("s_nop 1")
    A("v_mov_b32_dpp v19, v18 quad_perm:[1,0,3,2] row_mask:0xf bank_mask:0xf")
    A("v_cvt_pk_bf16_f32 v18, v18, v19")
    A("s_nop 1")
    A("v_mov_b32_dpp v19, v18 quad_perm:[0,0,2,2] row_mask:0xf bank_mask:0xf")
    by_locality("L_hps", lambda fl: hp_stores("v19", "v6", fl))
    stamp(8)
    next_pass("gu", "L_gu_top", True)

    A.label("L_tail")
    A("s_waitcnt vmcnt(0)")
    A("v_mov_b32 v11, 0")
    A("v_mov_b32 v3, 1")
    A("s_mov_b32 s47, 3")
    A("s_mov_b32 s49, 1")
    A(f"s_mov_b32 s46, {SPIN * 4}")
    A("s_mov_b32 s51, 0xffff0000")
    srd(4, 38, 39, None, W_SIZE)
    dn_index()
    A("s_lshl_b32 s55, s3, 5")
    A("s_add_u32 s55, s55, s60")
    srd(8, 16, 17, None, 1280)
    A("v_and_b32 v14, 1, v2")
    A("v_lshrrev_b32 v15, 5, v2")
    A("v_lshlrev_b32 v20, 3, v14")
    A("v_lshl_add_u32 v20, v15, 2, v20")
    A("s_min_u32 s42, s55, 79")
    A("s_lshl_b32 s42, s42, 4")
    A("buffer_load_dword v21, v20, s[8:11], s42 offen")
    A("v_lshl_add_u32 v22, v14, 1, v15")
    A(f"s_add_u32 s42, s42, {W_H}")
    A("v_lshl_add_u32 v22, v22, 2, s42")
    A("s_lshl_b32 s42, s55, 10")
    A(f"s_add_u32 s42, s42, {W_PT}")
    A("v_lshl_add_u32 v23, v2, 4, s42")
    A(f"s_mov_b32 s58, {SPIN}")
    A.label("L_dw")
    A(f"ds_read_b32 v12, v11 offset:{FL+28}")
    A(f"ds_read_b32 v13, v11 offset:{FL}")
    A(f"ds_read_b32 v14, v11 offset:{FL+16}")
    A("s_waitcnt lgkmcnt(0)")
    A("v_cmp_eq_u32 vcc, 4, v12")
    A("s_cbranch_vccnz L_dw_ok")
    A("s_sleep 2")
    A("s_sub_u32 s58, s58, 1")
    A("s_cbranch_scc0 L_dw")
    A.label("L_dw_ok")
    A("v_readfirstlane_b32 s59, v13")
    A("v_readfirstlane_b32 s53, v14")
    A("s_sub_u32 s53, s53, 1")
    A("s_waitcnt vmcnt(0)")
    A("v_lshlrev_b32 v20, 16, v21")
    A("v_and_b32 v21, s51, v21")
    DN_W = 48

    def dn_setup():
        A("s_mul_i32 s42, s3, 24576")
        A(f"s_add_u32 s42, s42, {DW}")
        A("v_lshl_add_u32 v17, v2, 4, s42")
        for j in range(24):
            A(f"ds_read_b128 v[{DN_W+4*j}:{DN_W+4*j+3}], v17 offset:{1024*j}")
    A("s_cmp_eq_u32 s54, 0xffff")
    A("s_cbranch_scc1 L_red")
    dn_setup()
    A("s_waitcnt lgkmcnt(0)")
    A.label("L_red")
    A("s_cmp_ge_u32 s55, 80")
    A("s_cbranch_scc1 L_red_done")
    A("s_mov_b32 s58, s46")
    stamp(5)
    A.label("L_h2")
    A("buffer_load_dwordx4 v[24:27], v23, s[4:7], 0 offen sc1")
    A("s_waitcnt vmcnt(0)")
    A("v_max3_u32 v12, v24, v25, v26")
    A("v_max_u32 v12, v12, v27")
    A("v_cmp_eq_u32 vcc, -1, v12")
    A("s_cbranch_vccz L_h2_ok")
    if redsleep:
        A(f"s_sleep {redsleep}")
    A("s_sub_u32 s58, s58, 1")
    A("s_cbranch_scc0 L_h2")
    A.label("L_h2_ok")
    stamp(6)
    A("v_permlane32_swap_b32 v24, v26")
    A("v_permlane32_swap_b32 v25, v27")
    A("s_nop 0")
    A("v_add_f32 v24, v24, v26")
    A("v_add_f32 v25, v25, v27")
    A("v_mov_b32 v26, v24")
    A("v_mov_b32 v27, v25")
    A("s_nop 0")
    A("v_permlane16_swap_b32 v24, v26")
    A("v_permlane16_swap_b32 v25, v27")
    A("s_nop 0")
    A("v_add_f32 v24, v24, v26")
    A("v_add_f32 v25, v25, v27")
    for r in (8, 4, 2):
        A("s_nop 0")
        dpp_add("v24", "v24", f"row_ror:{r}")
        dpp_add("v25", "v25", f"row_ror:{r}")
    A("v_cvt_pk_bf16_f32 v26, v24, v25")
    A("v_lshlrev_b32 v24, 16, v26")
    A("v_and_b32 v25, s51, v26")
    A("v_add_f32 v24, v24, v20")
    A("v_add_f32 v25, v25, v21")
    A("v_cvt_pk_bf16_f32 v26, v24, v25")
    A("s_mov_b32 exec_lo, 3")
    A("s_mov_b32 exec_hi, 3")
    by_locality("L_hst", lambda fl: A(f"buffer_store_dword v26, v22, s[4:7], 0 offen {fl}"))
    A("s_mov_b64 exec, -1")
    stamp(7)
    A.label("L_red_done")
    A("s_cmp_eq_u32 s54, 0xffff")
    A("s_cbranch_scc1 L_dn_fin")
    A(f"s_and_b32 s42, s54, {hprep - 1}")
    A(f"s_mul_i32 s42, s42, {HP_STR}")
    A("s_mul_i32 s43, s3, 768")
    A("s_add_u32 s42, s42, s43")
    A(f"s_add_u32 s42, s42, {W_HP}")
    A("v_mul_u32_u24 v14, 12, v2")
    A("v_add_u32 v6, s42, v14")
    A("v_and_b32 v14, 3, v2")
    A("v_lshlrev_b32 v14, 3, v14")
    A("v_bfe_u32 v15, v2, 5, 1")
    A("v_lshl_add_u32 v14, v15, 2, v14")
    A("v_bfe_u32 v15, v2, 4, 1")
    A("v_lshl_add_u32 v14, v15, 1, v14")
    A("v_bfe_u32 v15, v2, 3, 1")
    A("v_add_u32 v14, v14, v15")
    A("s_lshl_b32 s42, s3, 7")
    A(f"s_add_u32 s42, s42, {DP}")
    A("v_lshlrev_b32 v14, 2, v14")
    A("v_add_u32 v7, s42, v14")
    A("s_lshl_b32 s42, s54, 6")
    A(f"s_add_u32 s42, s42, {W_H}")
    A("v_bfe_u32 v14, v2, 1, 4")
    A("v_lshlrev_b32 v14, 2, v14")
    A("v_add_u32 v8, s42, v14")
    A("v_and_b32 v14, 1, v2")
    A("v_lshlrev_b32 v14, 4, v14")
    A("v_sub_u32 v9, 16, v14")
    for c in range(8):
        A(f"v_mov_b32 v{32+c}, 0")
    A("v_and_b32 v13, 31, v2")
    A("v_lshlrev_b32 v13, 2, v13")
    srd(8, 34, 35, None, 1280)
    A("s_lshl_b32 s43, s54, 6")
    A("v_lshlrev_b32 v14, 1, v2")
    A("s_waitcnt lgkmcnt(0)")
    stamp(3)
    if dnwait:
        A("s_cmp_ge_u32 s60, 24")
        A("s_cbranch_scc1 L_dg_ok")
        if dry:
            A("s_cmp_eq_u32 s49, 0")
            A("s_cbranch_scc1 L_dg_ok")
        lds_wait("L_dg", 20, 2, SPIN * 4)
    A("s_mov_b32 s58, s46")
    stamp(4)
    A.label("L_h4")
    A("buffer_load_dwordx3 v[16:18], v6, s[4:7], 0 offen sc1")
    A("buffer_load_dword v28, v8, s[4:7], 0 offen sc1")
    A("s_waitcnt vmcnt(0)")
    A("v_max3_u32 v19, v16, v17, v18")
    A("v_max_u32 v19, v19, v28")
    A("v_cmp_eq_u32 vcc, -1, v19")
    A("s_cbranch_vccz L_h4_ok")
    if dnsleep:
        A(f"s_sleep {dnsleep}")
    A("s_sub_u32 s58, s58, 1")
    A("s_cbranch_scc0 L_h4")
    A.label("L_h4_ok")
    stamp(9)
    for ip in range(12):
        q = ip // 3
        for c in range(8):
            A(f"v_dot2c_f32_bf16_dpp v{32+c}, v{16+ip%3}, v{DN_W+8*ip+c} quad_perm:[{q},{q},{q},{q}] row_mask:0xf bank_mask:0xf")
    A("v_lshlrev_b32 v28, v9, v28")
    A("v_and_b32 v28, s51, v28")
    A("s_nop 0")
    for c in range(4):
        A(f"v_permlane32_swap_b32 v{32+c}, v{36+c}")
    for c in range(4):
        A(f"v_add_f32 v{32+c}, v{32+c}, v{36+c}")
    A("s_nop 0")
    for c in range(2):
        A(f"v_permlane16_swap_b32 v{32+c}, v{34+c}")
    for c in range(2):
        A(f"v_add_f32 v{32+c}, v{32+c}, v{34+c}")
    A("s_nop 0")
    dpp_add("v34", "v32", "row_ror:8", "0x3")
    A("s_nop 1")
    dpp_add("v34", "v33", "row_ror:8", "0xc")
    A("s_nop 1")
    dpp_add("v35", "v34", "row_shl:4", "0x5")
    A("s_nop 1")
    dpp_add("v35", "v34", "row_shr:4", "0xa")
    A("ds_write_b32 v7, v35")
    A("s_mov_b64 exec, 1")
    A(f"ds_add_rtn_u32 v12, v11, v3 offset:{FL+12}")
    A("s_mov_b64 exec, -1")
    for w in range(4):
        A(f"ds_read_b32 v{16+w}, v13 offset:{DP+128*w}")
    A("s_waitcnt lgkmcnt(0)")
    arrive_check("L_dn_fin")
    A("v_add_f32 v16, v16, v17")
    A("v_add_f32 v18, v18, v19")
    A("v_add_f32 v16, v16, v18")
    bf16r("v16", "v16")
    A("v_add_f32 v16, v16, v28")
    A("s_nop 1")
    A("v_mov_b32_dpp v17, v16 quad_perm:[1,0,3,2] row_mask:0xf bank_mask:0xf")
    A("v_cvt_pk_bf16_f32 v16, v16, v17")
    if dry:
        A("s_cmp_eq_u32 s49, 0")
        A("s_cbranch_scc1 L_dn_fin")
    A("s_mov_b32 s44, 0x55555555")
    A("s_mov_b32 s45, 0")
    A("s_mov_b64 exec, s[44:45]")
    A(f"buffer_store_dword v16, v14, s[8:11], s43 offen {outfl}")
    A("s_mov_b64 exec, -1")
    stamp(10)
    A("s_cmp_lg_u32 s54, 0")
    A("s_cbranch_scc1 L_dn_fin")
    A(f"v_mov_b32 v12, {W_EPOCH}")
    A("v_mov_b32 v13, s59")
    A("s_mov_b64 exec, 1")
    A("buffer_store_dword v13, v12, s[4:7], 0 offen sc1")
    A("s_mov_b64 exec, -1")
    A.label("L_dn_fin")
    if dry:
        A("s_cmp_eq_u32 s49, 0")
        A("s_cbranch_scc1 L_disp3")
    if stamps:
        A("s_waitcnt vmcnt(0)")
        A("s_lshl_b32 s64, s2, 9")
        A("s_lshl_b32 s65, s3, 7")
        A("s_add_u32 s64, s64, s65")
        A(f"s_add_u32 s64, s64, {W_ST2}")
        A("v_mov_b32 v3, s64")
        A("s_mov_b64 exec, 1")
        for n in range(11):
            A(f"v_mov_b32 v4, s{70+2*n}")
            A(f"v_mov_b32 v5, s{71+2*n}")
            A(f"global_store_dwordx2 v3, v[4:5], s[38:39] offset:{8*n}")
            A("s_nop 1")
    A("s_endpgm")
    for lab, emit in far:
        A.label(f"{lab}_far")
        if dry:
            A("s_cmp_eq_u32 s49, 0")
            A(f"s_cbranch_scc1 {lab}_done")
        emit("sc1")
        A(f"s_branch {lab}_done")

    A.label("L_fin")
    A("s_waitcnt lgkmcnt(0)")
    if stamps:
        A("s_waitcnt vmcnt(0)")
        A("s_lshl_b32 s64, s2, 9")
        A("s_lshl_b32 s65, s3, 7")
        A("s_add_u32 s64, s64, s65")
        A(f"s_add_u32 s64, s64, {W_ST1}")
        A("v_mov_b32 v3, s64")
        A("s_mov_b64 exec, 1")
        for n in range(11):
            A(f"v_mov_b32 v4, s{70+2*n}")
            A(f"v_mov_b32 v5, s{71+2*n}")
            A(f"global_store_dwordx2 v3, v[4:5], s[38:39] offset:{8*n}")
            A("s_nop 1")
    A.label("L_end")
    A("s_endpgm")

    body_txt = "\n".join(A.L)
    out = [HDR.rstrip("\n"),
           "; Override launch geometry: 256 persistent workgroups (one per CU), 8 waves each.",
           f"; @launch grid=(256,1,1) block=(512,1,1) lds={LDS_BYTES}",
           '.amdgcn_target "amdgcn-amd-amdhsa--gfx950"',
           ".text", f".globl {KN}", ".p2align 8", f".type {KN},@function",
           body_txt,
           '.section .rodata,"a"', ".p2align 6", f".amdhsa_kernel {KN}",
           "  .amdhsa_next_free_vgpr 256", "  .amdhsa_next_free_sgpr 102", "  .amdhsa_accum_offset 256",
           "  .amdhsa_group_segment_fixed_size 0", "  .amdhsa_kernarg_size 96", "  .amdhsa_user_sgpr_count 2",
           "  .amdhsa_user_sgpr_kernarg_segment_ptr 1", "  .amdhsa_system_sgpr_workgroup_id_x 1",
           ".end_amdhsa_kernel", ""]
    return "\n".join(out)


if __name__ == "__main__":
    ap = argparse.ArgumentParser()
    ap.add_argument("-o", default="ka.s")
    ap.add_argument("--stamps", action="store_true")
    ap.add_argument("--pst", action="store_true")
    ap.add_argument("--noprio", action="store_true")
    ap.add_argument("--ns", type=int, default=27)
    ap.add_argument("--nopf", action="store_true")
    ap.add_argument("--hprep", type=int, default=2)
    ap.add_argument("--psleep", type=int, default=0)
    ap.add_argument("--diag", action="store_true")
    ap.add_argument("--nodnpair", action="store_true")
    ap.add_argument("--ptrep", type=int, default=1)
    ap.add_argument("--outfl", default="")
    ap.add_argument("--gdiag", action="store_true")
    ap.add_argument("--coarse", action="store_true")
    ap.add_argument("--gfine", action="store_true")
    ap.add_argument("--nolocal", action="store_true")
    ap.add_argument("--nodnwait", action="store_true")
    ap.add_argument("--dnsleep", type=int, default=0)
    ap.add_argument("--redsleep", type=int, default=0)
    ap.add_argument("--twice", action="store_true")
    ap.add_argument("--dry", action="store_true")
    a = ap.parse_args()
    t = gen(stamps=a.stamps, pst=a.pst, prio=not a.noprio, NS=a.ns, nopf=a.nopf, hprep=a.hprep, psleep=a.psleep,
            diag=a.diag, outfl=a.outfl, dnpair=not a.nodnpair, ptrep=a.ptrep, gdiag=a.gdiag, fine=not a.coarse, gfine=a.gfine, allow_local=not a.nolocal, dnwait=not a.nodnwait, dnsleep=a.dnsleep, redsleep=a.redsleep, twice=a.twice, dry=a.dry)
    open(a.o, "w").write(t)
    import hazard
    e = hazard.check(t)
    print(a.o, len(t), "bytes;", len(e), "hazards")
```

```python
import sys, argparse, struct

KN = "sequential_preLN__mha_block_cached__glu_gated_glu__decode_kernel"
REF = open('sequential_preLN__mha_block_cached__glu_gated_glu__decode.s.ref').read()
HDR = REF.split('; Override')[0]

HB = 32768 * 384
TILE = 32 * 384
STEP = 32 * TILE
NTILE = 1024
LOG2E = 0x3fb8aa3b
SCALE = 0x3d93cd3a

XF = 0
QP = 5120
PB = 11264
RC = 12288
AP = 16384
HN = 18432
GP = 19712
FL = 21760
GC = 21792
ST = GC + 2048
SV = ST + 32
DP = SV + 4096
DW = DP + 512
LDS_BYTES = DW + 98304
W_TK = 0x8000
W_EPOCH = 0xF000
W_QX = 0x10000
W_REC = 0x90000
W_PT = 0x110000
PT_STR = 0x14000
W_H = 0xE8000
H_STR = 0x580
W_HP = 0xF8000
HP_STR = 0xD00
W_SIZE = 0x160000
W_ST0 = 0x200000
W_ST1 = 0x210000
W_ST2 = 0x230000
SPIN = 20000


class E:
    def __init__(self):
        self.L = []

    def __call__(self, s):
        for x in s.split("\n"):
            x = x.strip()
            if x:
                self.L.append("  " + x)

    def label(self, n):
        self.L.append(n + ":")


def f32(x):
    return "0x%08x" % struct.unpack("<I", struct.pack("<f", x))[0]


def gen(stamps=False, pst=False, prio=True, NS=27, nopf=False, hprep=2, psleep=0, diag=False, outfl='', dnpair=True, ptrep=1, gdiag=False, fine=True, gfine=False, bal=False, allow_local=True, dnwait=True, dnsleep=0, redsleep=0, twice=False, dry=False, noq=False, sfine=False, dbgt=False, mall=False, nsb=None, stag=0, stag0=0, nred=0, rstag=0, gsleep=0, nobar0=False):
    nsets = 1; mdry = False; ngu = ndn = None; half = 0; leader = False
    A = E()
    far = []

    def stamp(n):
        if stamps and not (pst and n >= 3):
            A(f"s_memrealtime s[{70+2*n}:{71+2*n}]")
            A("s_waitcnt lgkmcnt(0)")

    def sstamp(n):
        if stamps and sfine:
            A(f"s_memrealtime s[{70+2*n}:{71+2*n}]")
            A("s_waitcnt lgkmcnt(0)")

    def pstamp(n):
        if stamps and pst:
            A(f"s_memrealtime s[{70+2*n}:{71+2*n}]")
            A("s_waitcnt lgkmcnt(0)")

    def bf16r(dst, src):
        A(f"v_cvt_pk_bf16_f32 {dst}, {src}, {src}")
        A(f"v_and_b32 {dst}, 0xffff0000, {dst}")

    def srd(n, lo, hi, add, nrec):
        if add is None:
            A(f"s_mov_b32 s{n}, s{lo}")
            A(f"s_mov_b32 s{n+1}, s{hi}")
        else:
            A(f"s_add_u32 s{n}, s{lo}, {add}")
            A(f"s_addc_u32 s{n+1}, s{hi}, 0")
        A(f"s_mov_b32 s{n+2}, {nrec}")
        A(f"s_mov_b32 s{n+3}, 0x20000")

    def dpp_add(dst, src, ctrl, bank="0xf"):
        A(f"v_add_f32_dpp {dst}, {src}, {src} {ctrl} row_mask:0xf bank_mask:{bank}")

    def rowsum16(v):
        for r in (8, 4, 2, 1):
            A("s_nop 1")
            dpp_add(v, v, f"row_ror:{r}")

    def poll_end(lab, vmax, sleep=0):
        A(f"v_cmp_eq_u32 vcc, -1, {vmax}")
        A(f"s_cbranch_vccz {lab}_ok")
        if sleep:
            A(f"s_sleep {sleep}")
        A("s_sub_u32 s58, s58, 1")
        A(f"s_cbranch_scc0 {lab}")
        A.label(f"{lab}_ok")

    def maxchain(dst, rs):
        rs = list(rs)
        A(f"v_max3_u32 {dst}, v{rs[0]}, v{rs[1]}, v{rs[2]}")
        rs = rs[3:]
        while len(rs) >= 2:
            A(f"v_max3_u32 {dst}, {dst}, v{rs[0]}, v{rs[1]}")
            rs = rs[2:]
        if rs:
            A(f"v_max_u32 {dst}, {dst}, v{rs[0]}")

    def pair_perm(units, spare, waits=None):
        out = []
        for k, (ar, br) in enumerate(units):
            if waits is not None and waits[k] is not None:
                A(f"s_waitcnt vmcnt({waits[k]})")
            o = []
            for a, b in zip(ar, br):
                A(f"v_perm_b32 v{spare}, v{b}, v{a}, s56")
                A(f"v_perm_b32 v{b}, v{b}, v{a}, s57")
                o += [spare, b]
                spare = a
            out.append(o)
        return out, spare

    def lds_wait(lab, off, sleep, spin=SPIN):
        A(f"s_mov_b32 s58, {spin}")
        A.label(lab)
        A(f"ds_read_b32 v12, v11 offset:{FL+off}")
        A("s_waitcnt lgkmcnt(0)")
        A("v_cmp_ne_u32 vcc, 0, v12")
        A(f"s_cbranch_vccnz {lab}_ok")
        if sleep:
            A(f"s_sleep {sleep}")
        A("s_sub_u32 s58, s58, 1")
        A(f"s_cbranch_scc0 {lab}")
        A.label(f"{lab}_ok")

    def xcc_add(dst):
        A(f"s_getreg_b32 s{dst}, hwreg(HW_REG_XCC_ID, 0, 4)")
        A(f"s_mul_i32 s43, s{dst}, s{dst}")
        A("s_lshl_b32 s43, s43, 15")
        A(f"s_lshl_b32 s{dst}, s{dst}, 6")
        A(f"s_add_u32 s{dst}, s{dst}, s43")
        A(f"s_add_u32 s{dst}, s{dst}, 1")

    def handshake(lab, local=False):
        A(f"s_mov_b32 s58, {SPIN}")
        A.label(lab)
        A("global_load_dword v13, v11, s[36:37] sc1")
        A("s_waitcnt vmcnt(0)")
        A("v_and_b32 v12, 63, v13")
        A("v_cmp_gt_u32 vcc, 32, v12")
        A(f"s_cbranch_vccz {lab}_ok")
        A("s_sleep 32")
        A("s_sub_u32 s58, s58, 1")
        A(f"s_cbranch_scc0 {lab}")
        A.label(f"{lab}_ok")
        if local:
            xcc_add(42)
            A("s_lshl_b32 s42, s42, 5")
            A("v_readfirstlane_b32 s43, v13")
            A("s_cmp_eq_u32 s42, s43")
            A(f"s_cselect_b32 s53, {1 if allow_local else 0}, 0")

    def signal():
        A("v_mov_b32 v13, s59")
        A("s_add_u32 s42, s53, 1")
        A("v_mov_b32 v14, s42")
        A("v_mov_b32 v12, 1")
        A("s_mov_b64 exec, 1")
        A(f"ds_write_b32 v11, v13 offset:{FL}")
        A(f"ds_write_b32 v11, v14 offset:{FL+16}")
        A(f"ds_add_u32 v11, v12 offset:{FL+28}")
        A("s_mov_b64 exec, -1")

    def ppoll(lab, sets, nreg, issue, nld, onok, stag=stag, stag0=stag0):
        n = len(sets)
        for k in range(n):
            issue(sets[k])
            if k < n - 1 and stag0:
                A(f"s_sleep {stag0}")
        A.label(lab)
        for k in range(n):
            A(f"s_waitcnt vmcnt({nld * (n - 1)})")
            maxchain("v14", range(sets[k], sets[k] + nreg))
            A("v_cmp_eq_u32 vcc, -1, v14")
            A(f"s_cbranch_vccnz {lab}_n{k}")
            onok(sets[k])
            A(f"s_branch {lab}_ok")
            A.label(f"{lab}_n{k}")
            if n == 1 and psleep:
                A(f"s_sleep {psleep}")
            issue(sets[k])
            if stag and n > 1:
                A(f"s_sleep {stag}")
        A("s_sub_u32 s58, s58, 1")
        A(f"s_cbranch_scc0 {lab}")
        A.label(f"{lab}_ok")

    def copyregs(dst, src, n):
        for i in range(n):
            A(f"v_mov_b32 v{dst+i}, v{src+i}")

    def arrive_issue():
        A("s_mov_b64 exec, 1")
        A(f"ds_add_rtn_u32 v12, v11, v3 offset:{FL+20}")
        A("s_mov_b64 exec, -1")

    def arrive_check(lab_notlast):
        A("v_readfirstlane_b32 s42, v12")
        A("s_cmp_lg_u32 s42, s47")
        A(f"s_cbranch_scc1 {lab_notlast}")

    def next_pass(role, top, hs):
        A.label(f"L_{role}_next")
        A("s_cmp_lg_u32 s49, 0")
        A("s_cbranch_scc1 L_fin")
        A.label(f"L_{role}_real")
        A("s_mov_b32 s49, 1")
        A("s_mov_b32 s47, 3")
        A("v_mov_b32 v3, 1")
        if role == "gu":
            for j in range(8):
                A(f"v_mov_b32 v{208+j}, 0")
        if hs:
            if role == "gu" and leader:
                A("s_cmp_lg_u32 s3, 0")
                A("s_cbranch_scc1 L_hs_gu_ok")
            handshake(f"L_hs_{role}", role == "gu")
            if role == "gu":
                signal()
        stamp(2)
        lds_wait(f"L_pw_{role}", 8, 2)
        if prio:
            A("s_setprio 3")
        stamp(4)
        A(f"s_mov_b32 s58, {SPIN}")
        A(f"s_branch {top}")

    def dn_index():
        A("s_add_u32 s54, s60, 8")
        A("s_cmp_lt_u32 s60, 12")
        A("s_cselect_b32 s54, s54, 0xffff")
        A("s_sub_u32 s42, s60, 24")
        A("s_cmp_ge_u32 s60, 24")
        A("s_cselect_b32 s54, s42, s54")
        A("s_cmp_eq_u32 s61, 0")
        A("s_cselect_b32 s54, s54, 0xffff")

    def first_pass(role):
        A("s_mov_b32 s49, 0")
        A("s_mov_b32 s58, 0")
        A("s_mov_b32 s47, 0")
        A("s_mov_b32 s53, 0")
        A("v_mov_b32 v3, 0")
        if not dry:
            A(f"s_branch L_{role}_real")

    def h_base():
        A(f"s_mul_i32 s42, s48, {H_STR}")
        A(f"s_add_u32 s42, s42, {W_H}")

    def pt_stores(r, addr):
        for k in range(ptrep):
            if k == 0:
                A(f"buffer_store_dwordx2 v[{r}:{r+1}], {addr}, s[4:7], 0 offen sc1")
            else:
                A(f"s_mov_b32 s42, {k * PT_STR}")
                A(f"buffer_store_dwordx2 v[{r}:{r+1}], {addr}, s[4:7], s42 offen sc1")

    def hp_stores(val, addr, fl="sc1"):
        for k in range(hprep // 2):
            if k == 0:
                A(f"buffer_store_dword {val}, {addr}, s[4:7], 0 offen {fl}")
            else:
                A(f"s_mov_b32 s42, {k * 2 * HP_STR}")
                A(f"buffer_store_dword {val}, {addr}, s[4:7], s42 offen {fl}")

    def by_locality(lab, emit):
        A("s_cmp_eq_u32 s53, 0")
        A(f"s_cbranch_scc1 {lab}_far")
        emit("")
        A.label(f"{lab}_done")
        far.append((lab, emit))

    def addr_sb(dst, t):
        A("s_lshl_b32 s42, s52, 5")
        A("s_lshl_b32 s43, s48, 14")
        A("s_add_u32 s42, s42, s43")
        A(f"s_add_u32 s42, s42, {W_PT}")
        A(f"v_lshrrev_b32 {dst}, 2, v2")
        A(f"v_lshlrev_b32 {dst}, 10, {dst}")
        A(f"v_and_b32 {t}, 3, v2")
        A(f"v_lshl_add_u32 {dst}, {t}, 3, {dst}")
        A(f"v_add_u32 {dst}, s42, {dst}")

    def addr_gu(dst, t):
        A(f"v_and_b32 {dst}, 1, v2")
        A(f"v_mul_u32_u24 {dst}, {HP_STR}, {dst}")
        A(f"v_lshrrev_b32 {t}, 1, v2")
        A(f"v_lshl_add_u32 {dst}, {t}, 2, {dst}")
        A("s_lshl_b32 s42, s48, 7")
        A(f"s_add_u32 s42, s42, {W_HP}")
        A(f"v_add_u32 {dst}, s42, {dst}")

    A.label(KN)
    A("s_cmp_ge_u32 s2, 256")
    A("s_cbranch_scc1 L_end")
    A("s_load_dwordx16 s[16:31], s[0:1], 0")
    A("s_load_dwordx8 s[32:39], s[0:1], 64")
    if stamps:
        A("s_memrealtime s[70:71]")
    A("v_lshrrev_b32 v1, 6, v0")
    A("v_and_b32 v2, 63, v0")
    A("s_lshr_b32 s60, s2, 3")
    A("v_readfirstlane_b32 s3, v1")
    A("s_and_b32 s61, s2, 7")
    A("s_cmp_ge_u32 s3, 4")
    A("s_cbranch_scc1 L_helper")

    VA, VB, VC = 3, 4, 5
    Q0 = 6
    VM, VL = 9, 10
    VQ = 11
    ACC = 12
    VPW, VPR, VFM = 18, 19, 20
    T0, T1, T2, T3 = 21, 22, 23, 24
    VT, VZ, VONE = 25, 26, 27
    S = 32
    P = 48
    KB, VBASE = 128, 192

    def kvload(base, i, srdn, soff):
        vo = (VA, VB, VC)[i // 6]
        off = (i % 6) * 768
        r = base + 4 * i
        A(f"buffer_load_dwordx3 v[{r}:{r+2}], v{vo}, s[{srdn}:{srdn+3}], {soff} offen offset:{off} nt")

    A("s_mul_i32 s62, s60, %d" % HB)
    A("s_lshl_b32 s63, s61, 2")
    A("s_add_u32 s63, s63, s3")
    A("s_mul_i32 s63, s63, %d" % TILE)
    A(f"v_mul_u32_u24 v{VA}, 12, v2")
    A(f"v_add_u32 v{VB}, 4608, v{VA}")
    A(f"v_add_u32 v{VC}, 9216, v{VA}")
    A("s_lshl_b32 s64, s60, 8")
    A(f"s_add_u32 s64, s64, {W_TK}")
    A("s_waitcnt lgkmcnt(0)")
    sstamp(3)
    srd(4, 18, 19, "s62", HB)
    srd(8, 20, 21, "s62", HB)
    A("s_add_u32 s92, s38, s64")
    A("s_addc_u32 s93, s39, 0")
    if not nobar0:
        A("s_barrier")
    sstamp(4)
    for i in range(16):
        kvload(KB, i, 4, "s63")
    sstamp(5)
    for i in range(16):
        kvload(VBASE, i, 8, "s63")
    sstamp(6)
    A(f"v_bfe_u32 v{T0}, v2, 4, 1")
    A(f"v_bfe_u32 v{T1}, v2, 3, 1")
    A(f"v_lshl_add_u32 v{T0}, v{T1}, 1, v{T0}")
    A(f"v_bfe_u32 v{T1}, v2, 2, 1")
    A(f"v_lshl_add_u32 v{T0}, v{T1}, 2, v{T0}")
    A(f"v_bfe_u32 v{T1}, v2, 1, 1")
    A(f"v_lshl_add_u32 v{T0}, v{T1}, 3, v{T0}")
    A(f"v_lshlrev_b32 v{T0}, 3, v{T0}")
    A(f"v_and_b32 v{T1}, 1, v2")
    A(f"v_lshl_add_u32 v{T0}, v{T1}, 2, v{T0}")
    A(f"v_lshrrev_b32 v{T2}, 5, v2")
    A(f"v_lshlrev_b32 v{T2}, 7, v{T2}")
    A(f"s_lshl_b32 s64, s3, 8")
    A(f"s_add_u32 s64, s64, {PB}")
    A(f"v_add_u32 v{VPR}, s64, v{T2}")
    A(f"v_add_u32 v{VPW}, v{VPR}, v{T0}")
    A(f"v_mov_b32 v{T2}, 0xffff")
    A(f"v_mov_b32 v{T3}, 0xffff0000")
    A(f"v_cmp_eq_u32 vcc, 1, v{T1}")
    A("s_mov_b32 s66, 0xcccccccc")
    A("s_mov_b32 s67, 0xcccccccc")
    A(f"v_cndmask_b32 v{VFM}, v{T2}, v{T3}, vcc")
    A(f"v_mov_b32 v{VM}, 0xff800000")
    A(f"v_mov_b32 v{VL}, 0")
    for j in range(6):
        A(f"v_mov_b32 v{ACC+j}, 0")
    A(f"v_and_b32 v{VQ}, 31, v2")
    A(f"v_mul_u32_u24 v{VQ}, 24, v{VQ}")
    A(f"v_mov_b32 v{VZ}, 0")
    A(f"v_mov_b32 v{VONE}, 1")
    A(f"s_mov_b32 s65, {NS-2}")
    A("s_mov_b32 s50, 0")
    A(f"s_mov_b32 s68, {SCALE:#x}")
    A(f"s_mov_b32 s69, {LOG2E:#x}")
    A("s_barrier")
    stamp(1)
    for w in range(8):
        for j in range(3):
            A(f"ds_read_b64 v[{S+6*w+2*j}:{S+6*w+2*j+1}], v{VQ} offset:{QP + 768*w + 8*j}")
    A("s_waitcnt lgkmcnt(0)")
    for st in (1, 2, 4):
        for w in range(0, 8, 2 * st):
            for j in range(6):
                A(f"v_add_f32 v{S+6*w+j}, v{S+6*w+j}, v{S+6*(w+st)+j}")
    for j in range(3):
        A(f"v_cvt_pk_bf16_f32 v{Q0+j}, v{S+2*j}, v{S+2*j+1}")

    def body(W, tag):
        hi_so = "s96" if (tag == "d" and half) else "s63"
        for i in range(16):
            r = KB + 4 * i
            A(f"s_waitcnt vmcnt({W})")
            A(f"v_dot2_f32_bf16 v{S+i}, v{r}, v{Q0}, 0")
            A(f"v_dot2_f32_bf16 v{S+i}, v{r+1}, v{Q0+1}, v{S+i}")
            A(f"v_dot2_f32_bf16 v{S+i}, v{r+2}, v{Q0+2}, v{S+i}")
            kvload(KB, i, 4, "s63" if i < 8 else hi_so)
            if i % 2 == 1 and i >= 3:
                a = S + i - 3
                A(f"v_permlane16_swap_b32 v{a}, v{a+1}")
                A(f"v_add_f32 v{a}, v{a}, v{a+1}")
        A("s_nop 0")
        A(f"v_permlane16_swap_b32 v{S+14}, v{S+15}")
        A(f"v_add_f32 v{S+14}, v{S+14}, v{S+15}")
        for q in range(4):
            dpp_add(f"v{S+4*q}", f"v{S+4*q}", "row_ror:8", "0x3")
        for q in range(4):
            dpp_add(f"v{S+4*q}", f"v{S+4*q+2}", "row_ror:8", "0xc")
        A("s_nop 0")
        for r in range(2):
            dpp_add(f"v{S+8*r}", f"v{S+8*r}", "row_half_mirror", "0x5")
        A("s_nop 0")
        for r in range(2):
            dpp_add(f"v{S+8*r}", f"v{S+8*r+4}", "row_half_mirror", "0xa")
        A("s_nop 1")
        dpp_add(f"v{S+1}", f"v{S}", "quad_perm:[2,3,0,1]")
        dpp_add(f"v{S+2}", f"v{S+8}", "quad_perm:[2,3,0,1]")
        A(f"v_cndmask_b32 v{S}, v{S+1}, v{S+2}, s[66:67]")
        A("s_nop 1")
        dpp_add(f"v{T0}", f"v{S}", "quad_perm:[1,0,3,2]")
        bf16r(f"v{T0}", f"v{T0}")
        A(f"v_mul_f32 v{T0}, s68, v{T0}")
        bf16r(f"v{T0}", f"v{T0}")
        if tag == "d" and half:
            A(f"v_cndmask_b32 v{T0}, v{T0}, v28, s[98:99]")
        A("s_nop 1")
        A(f"v_max_f32_dpp v{T1}, v{T0}, v{T0} row_ror:8 row_mask:0xf bank_mask:0xf")
        A("s_nop 1")
        A(f"v_max_f32_dpp v{T1}, v{T1}, v{T1} row_ror:4 row_mask:0xf bank_mask:0xf")
        A("s_nop 1")
        A(f"v_max_f32_dpp v{T1}, v{T1}, v{T1} row_ror:2 row_mask:0xf bank_mask:0xf")
        A(f"v_mov_b32 v{T2}, v{T1}")
        A("s_nop 1")
        A(f"v_permlane16_swap_b32 v{T1}, v{T2}")
        A(f"v_max_f32 v{T1}, v{T1}, v{T2}")
        A(f"v_mov_b32 v{T2}, v{T1}")
        A("s_nop 1")
        A(f"v_permlane32_swap_b32 v{T1}, v{T2}")
        A(f"v_max_f32 v{T1}, v{T1}, v{T2}")
        A(f"v_cmp_gt_f32 vcc, v{T1}, v{VM}")
        A(f"s_cbranch_vccz L_nors{tag}")
        A(f"v_sub_f32 v{T2}, v{VM}, v{T1}")
        A(f"v_mul_f32 v{T2}, s69, v{T2}")
        A(f"v_exp_f32 v{T2}, v{T2}")
        A(f"v_mov_b32 v{VM}, v{T1}")
        for j in range(6):
            A(f"v_mul_f32 v{ACC+j}, v{ACC+j}, v{T2}")
        A(f"v_mul_f32 v{VL}, v{VL}, v{T2}")
        A.label(f"L_nors{tag}")
        A(f"v_sub_f32 v{T0}, v{T0}, v{VM}")
        A(f"v_mul_f32 v{T0}, s69, v{T0}")
        A(f"v_exp_f32 v{T0}, v{T0}")
        A("s_nop 0")
        A(f"v_cvt_pk_bf16_f32 v{T1}, v{T0}, v{T0}")
        A(f"v_add_f32 v{VL}, v{VL}, v{T0}")
        A(f"v_and_b32 v{T1}, v{T1}, v{VFM}")
        A(f"ds_write_b32 v{VPW}, v{T1}")
        for j in range(8):
            A(f"ds_read_b128 v[{P+4*j}:{P+4*j+3}], v{VPR} offset:{16*j}")
        for i in range(16):
            r = VBASE + 4 * i
            if i % 2 == 0:
                A(f"s_waitcnt vmcnt({W}) lgkmcnt({7 - i//2})")
            else:
                A(f"s_waitcnt vmcnt({W})")
            lo, hi = P + 2 * i, P + 2 * i + 1
            for j in range(3):
                A(f"v_dot2_f32_bf16 v{ACC+2*j}, v{r+j}, v{lo}, v{ACC+2*j}")
                A(f"v_dot2_f32_bf16 v{ACC+2*j+1}, v{r+j}, v{hi}, v{ACC+2*j+1}")
            kvload(VBASE, i, 8, "s63" if i < 8 else hi_so)

    A.label("L_loop")
    A(f"s_add_u32 s63, s63, {STEP}")
    body(31, "s")
    A("s_sub_u32 s65, s65, 1")
    A("s_cmp_lg_u32 s65, 0")
    A("s_cbranch_scc1 L_loop")
    A(f"s_add_u32 s63, s63, {STEP}")
    A("s_mov_b32 s94, 0")
    TK1 = NTILE - half
    TEND = TK1 + 2 * half
    if half:
        A("s_mov_b32 s96, s63")
        A("s_mov_b64 s[98:99], 0")
        A("s_mov_b32 s97, 0")
        A("v_mov_b32 v28, 0xff800000")
    A("s_branch L_dent")
    A.label("L_dtop")
    A("s_waitcnt vmcnt(32)")
    A(f"v_readfirstlane_b32 s94, v{VT}")
    A(f"s_add_u32 s94, s94, {NS*32}")
    A(f"s_min_u32 s94, s94, {TEND}")
    if half:
        A("s_cmp_lg_u32 s97, 0")
        A("s_cselect_b64 s[98:99], s[66:67], 0")
        A(f"s_add_u32 s95, s94, {TK1}")
        A(f"s_mul_i32 s95, s95, {TILE // 2}")
        A(f"s_mul_i32 s63, s94, {TILE}")
        A(f"s_cmp_ge_u32 s94, {TK1}")
        A("s_cselect_b32 s63, s95, s63")
        A(f"s_cselect_b32 s96, {HB}, s63")
        A("s_cselect_b32 s97, 1, 0")
    else:
        A(f"s_mul_i32 s63, s94, {TILE}")
    A.label("L_dent")
    A("s_mov_b64 exec, 1")
    A(f"global_atomic_add v{VT}, v{VZ}, v{VONE}, s[92:93] sc0")
    A("s_mov_b64 exec, -1")
    body(32, "d")
    A(f"s_cmp_lt_u32 s94, {TEND}")
    A("s_cbranch_scc1 L_dtop")
    stamp(2)
    A(f"v_mov_b32 v{T0}, v{VL}")
    A("s_nop 1")
    A(f"v_permlane32_swap_b32 v{VL}, v{T0}")
    A(f"v_add_f32 v{VL}, v{VL}, v{T0}")
    A(f"v_mov_b32 v{T0}, v{VL}")
    A("s_nop 1")
    A(f"v_permlane16_swap_b32 v{VL}, v{T0}")
    A(f"v_add_f32 v{VL}, v{VL}, v{T0}")
    rowsum16(f"v{VL}")
    A(f"v_mul_f32 v{VL}, 0.5, v{VL}")
    for j in range(3):
        A(f"v_permlane32_swap_b32 v{ACC+2*j}, v{ACC+2*j+1}")
    for j in range(3):
        A(f"v_add_f32 v{ACC+2*j}, v{ACC+2*j}, v{ACC+2*j+1}")
    A(f"v_lshrrev_b32 v{T1}, 5, v2")
    A(f"v_lshl_add_u32 v{T0}, v{T1}, 2, v{VQ}")
    A("s_lshl_b32 s64, s3, 10")
    A(f"s_add_u32 s64, s64, {RC}")
    A(f"v_add_u32 v{T0}, s64, v{T0}")
    for j in range(3):
        A(f"ds_write_b32 v{T0}, v{ACC+2*j} offset:{8*j}")
    A(f"v_mov_b32 v{T1}, s64")
    A(f"v_lshlrev_b32 v{T0}, 4, v2")
    A("s_mov_b64 exec, 1")
    A(f"ds_write_b32 v{T1}, v{VM} offset:768")
    A(f"ds_write_b32 v{T1}, v{VL} offset:772")
    A(f"ds_add_rtn_u32 v{T2}, v{VZ}, v{VONE} offset:{FL+4}")
    A("s_mov_b64 exec, -1")
    for w in range(4):
        A(f"ds_read_b64 v[{48+2*w}:{49+2*w}], v{VZ} offset:{RC+1024*w+768}")
    A("s_mov_b32 exec_hi, 0x1ffff")
    for w in range(4):
        A(f"ds_read_b128 v[{32+4*w}:{35+4*w}], v{T0} offset:{RC+1024*w}")
    A("s_lshl_b32 s64, s2, 10")
    A(f"s_add_u32 s64, s64, {W_REC}")
    A(f"v_add_u32 v{T3}, s64, v{T0}")
    srd(12, 38, 39, None, W_SIZE)
    A("v_cmp_eq_u32 vcc, 48, v2")
    A("s_waitcnt lgkmcnt(8)")
    A(f"v_readfirstlane_b32 s64, v{T2}")
    A("s_cmp_lg_u32 s64, 3")
    if not mall:
        A("s_cbranch_scc1 L_sfin")
    A("s_waitcnt lgkmcnt(4)")
    A("v_max3_f32 v56, v48, v50, v52")
    A("v_max_f32 v56, v56, v54")
    for w in range(4):
        A(f"v_sub_f32 v{57+w}, v{48+2*w}, v56")
    for w in range(4):
        A(f"v_mul_f32 v{57+w}, s69, v{57+w}")
    for w in range(4):
        A(f"v_exp_f32 v{57+w}, v{57+w}")
    A("s_waitcnt lgkmcnt(0)")
    for j in range(4):
        A(f"v_mul_f32 v{64+j}, v{32+j}, v57")
    for w in range(1, 4):
        for j in range(4):
            A(f"v_fmac_f32 v{64+j}, v{32+4*w+j}, v{57+w}")
    A("v_cndmask_b32 v64, v64, v56, vcc")
    if mall:
        A("s_cbranch_scc1 L_sfin")
    A(f"buffer_store_dwordx4 v[64:67], v{T3}, s[12:15], 0 offen sc1")
    if stamps:
        A("s_memrealtime s[84:85]")
    A("s_mov_b64 exec, 1")
    A(f"ds_write_b32 v{VZ}, v{VONE} offset:{FL+8}")
    if stamps:
        A("s_lshl_b32 s64, s2, 7")
        A(f"s_add_u32 s64, s64, {W_ST0}")
        A("v_mov_b32 v60, s64")
        A("s_waitcnt lgkmcnt(0)")
        A("v_mov_b32 v62, s84")
        A("v_mov_b32 v63, s85")
        A(f"global_store_dwordx2 v60, v[62:63], s[38:39] offset:{8*8}")
    A("s_mov_b64 exec, -1")
    A.label("L_sfin")
    A("s_mov_b64 exec, -1")
    A("s_waitcnt lgkmcnt(0)")
    if stamps:
        stamp(3)
        A("s_cmp_lg_u32 s3, 0")
        A("s_cbranch_scc1 L_sfin2")
        A("s_lshl_b32 s64, s2, 7")
        A(f"s_add_u32 s64, s64, {W_ST0}")
        A("v_mov_b32 v3, s64")
        for n in range(7 if sfine else 3):
            A(f"v_mov_b32 v4, s{70+2*n}")
            A(f"v_mov_b32 v5, s{71+2*n}")
            A(f"global_store_dwordx2 v3, v[4:5], s[38:39] offset:{8*n}")
            A("s_nop 1")
        A.label("L_sfin2")
        for n in range(3, 11):
            A(f"s_mov_b32 s{70+2*n}, 0")
            A(f"s_mov_b32 s{71+2*n}, 0")
    A("s_cmp_eq_u32 s61, 0")
    A("s_cbranch_scc1 L_tail")
    A("s_endpgm")

    A.label("L_helper")
    if prio:
        A("s_setprio 3")
    A("s_sub_u32 s3, s3, 4")
    A(f"v_mov_b32 v23, {W_EPOCH}")
    A("s_cmp_eq_u32 s3, 3")
    A("s_cbranch_scc1 L_g3")
    EP = 60
    A("v_lshrrev_b32 v3, 3, v2")
    A("v_and_b32 v4, 7, v2")
    A("v_mul_u32_u24 v5, 12288, v3")
    A("v_lshl_add_u32 v5, v4, 4, v5")
    A("v_lshlrev_b32 v6, 4, v2")
    A("v_lshlrev_b32 v7, 2, v2")
    A("s_mul_i32 s62, s60, 384")
    A("s_lshl_b32 s63, s3, 7")
    A("s_add_u32 s62, s62, s63")
    A("s_mul_i32 s63, s61, %d" % (80 * 12288))
    A("s_sub_u32 s65, %d, s62" % (640 * 12288))
    A("s_waitcnt lgkmcnt(0)")
    srd(8, 16, 17, None, 1280)
    A("buffer_load_dwordx4 v[16:19], v6, s[8:11], 0 offen")
    A("buffer_load_dword v20, v7, s[8:11], 0 offen offset:1024")
    srd(12, 22, 23, "s62", "s65")
    WQ = 64
    for i in range(10):
        A(f"buffer_load_dwordx4 v[{WQ+4*i}:{WQ+4*i+3}], v5, s[12:15], s63 offen nt")
        if i < 9:
            A("s_add_u32 s63, s63, %d" % (8 * 12288))
    srd(4, 38, 39, None, W_SIZE)
    A(f"buffer_load_dword v{EP}, v23, s[4:7], 0 offen sc1")
    if not nobar0:
        A("s_barrier")
    if noq:
        A("s_barrier")

    def ln_sums(F, a, b):
        A(f"v_add_f32 {a}, v{F}, v{F+1}")
        A(f"v_mul_f32 {b}, v{F}, v{F}")
        A(f"v_fmac_f32 {b}, v{F+1}, v{F+1}")
        for i in range(2, 10):
            A(f"v_add_f32 {a}, {a}, v{F+i}")
            A(f"v_fmac_f32 {b}, v{F+i}, v{F+i}")
        A("s_nop 1")
        A(f"v_permlane32_swap_b32 {a}, {b}")
        A(f"v_add_f32 {a}, {a}, {b}")
        A(f"v_mov_b32 {b}, {a}")
        A("s_nop 1")
        A(f"v_permlane16_swap_b32 {a}, {b}")
        A(f"v_add_f32 {a}, {a}, {b}")
        rowsum16(a)
        A(f"v_mov_b32 {b}, {a}")
        A("s_nop 1")
        A(f"v_permlane32_swap_b32 {a}, {b}")

    pstamp(3)
    A("s_waitcnt vmcnt(11)")
    pstamp(4)
    F = 21
    for i in range(5):
        A(f"v_lshlrev_b32 v{F+2*i}, 16, v{16+i}")
        A(f"v_and_b32 v{F+2*i+1}, 0xffff0000, v{16+i}")
    ln_sums(F, "v12", "v13")
    A(f"v_mul_f32 v12, {f32(1/640)}, v12")
    A(f"v_mul_f32 v13, {f32(1/640)}, v13")
    A("v_fma_f32 v13, -v12, v12, v13")
    bf16r("v12", "v12")
    bf16r("v13", "v13")
    A(f"v_add_f32 v13, {f32(1e-5)}, v13")
    bf16r("v13", "v13")
    A("v_sqrt_f32 v13, v13")
    A("s_nop 0")
    bf16r("v13", "v13")
    A("v_rcp_f32 v13, v13")
    for i in range(5):
        A(f"v_sub_f32 v{F+2*i}, v{F+2*i}, v12")
        A(f"v_sub_f32 v{F+2*i+1}, v{F+2*i+1}, v12")
        A(f"v_cvt_pk_bf16_f32 v{16+i}, v{F+2*i}, v{F+2*i+1}")
    for i in range(5):
        A(f"v_lshlrev_b32 v{F+2*i}, 16, v{16+i}")
        A(f"v_and_b32 v{F+2*i+1}, 0xffff0000, v{16+i}")
    for i in range(5):
        A(f"v_mul_f32 v{F+2*i}, v{F+2*i}, v13")
        A(f"v_mul_f32 v{F+2*i+1}, v{F+2*i+1}, v13")
        A(f"v_cvt_pk_bf16_f32 v{16+i}, v{F+2*i}, v{F+2*i+1}")
    for i in range(5):
        A(f"v_and_b32 v{32+4*i}, 0xffff, v{16+i}")
        A(f"v_lshlrev_b32 v{33+4*i}, 16, v{16+i}")
        A(f"v_lshrrev_b32 v{34+4*i}, 16, v{16+i}")
        A(f"v_and_b32 v{35+4*i}, 0xffff0000, v{16+i}")
    A("v_lshlrev_b32 v12, 6, v2")
    for i in range(4):
        A(f"ds_write_b128 v12, v[{32+4*i}:{35+4*i}] offset:{XF+16*i}")
    A(f"ds_write_b128 v6, v[48:51] offset:{XF+4096}")
    A("s_mul_i32 s64, s61, 640")
    A("v_lshlrev_b32 v12, 3, v3")
    A("v_add_u32 v12, s64, v12")
    for i in range(10):
        A(f"ds_read_b64 v[{32+2*i}:{33+2*i}], v12 offset:{XF+64*i}")
    for j in range(8):
        A(f"v_mov_b32 v{52+j}, 0")
    pstamp(5)
    for i in range(10):
        A(f"s_waitcnt vmcnt({10 - i}) lgkmcnt({0 if (stamps and pst) else 9-i})")
        for j in range(4):
            A(f"v_dot2c_f32_bf16 v{52+2*j}, v{WQ+4*i+j}, v{32+2*i}")
            A(f"v_dot2c_f32_bf16 v{53+2*j}, v{WQ+4*i+j}, v{33+2*i}")
    pstamp(6)
    A("v_bfe_u32 v12, v2, 5, 1")
    A("v_bfe_u32 v13, v2, 4, 1")
    A("v_lshl_add_u32 v12, v13, 1, v12")
    A("v_bfe_u32 v13, v2, 3, 1")
    for j in range(4):
        A(f"v_permlane32_swap_b32 v{52+2*j}, v{53+2*j}")
    A("v_lshl_add_u32 v12, v13, 2, v12")
    A("v_lshl_add_u32 v12, v4, 3, v12")
    for j in range(4):
        A(f"v_add_f32 v{52+2*j}, v{52+2*j}, v{53+2*j}")
    A("s_lshl_b32 s64, s2, 11")
    A("s_lshl_b32 s63, s3, 9")
    A("v_permlane16_swap_b32 v52, v54")
    A("v_permlane16_swap_b32 v56, v58")
    A("s_add_u32 s64, s64, s63")
    A(f"s_add_u32 s64, s64, {W_QX}")
    A("v_add_f32 v52, v52, v54")
    A("v_add_f32 v56, v56, v58")
    A("v_lshlrev_b32 v12, 3, v12")
    A("v_add_u32 v12, s64, v12")
    dpp_add("v14", "v52", "row_ror:8", "0x3")
    A("s_nop 1")
    dpp_add("v14", "v56", "row_ror:8", "0xc")
    A("s_waitcnt vmcnt(0)")
    A(f"v_add_u32 v15, 1, v{EP}")
    A("buffer_store_dwordx2 v[14:15], v12, s[4:7], 0 offen sc1")
    pstamp(7)
    A("s_branch L_gather")

    ROLE_PROG = """s_mul_i32 s42, s60, 3
        s_mov_b32 s43, 3
        s_mul_i32 s40, s60, 6
        s_sub_u32 s40, s40, 36
        s_cmp_ge_u32 s60, 12
        s_cselect_b32 s42, s40, s42
        s_cselect_b32 s43, 6, s43
        s_mul_i32 s40, s60, 5
        s_sub_u32 s40, s40, 16
        s_cmp_ge_u32 s60, 20
        s_cselect_b32 s42, s40, s42
        s_cselect_b32 s43, 5, s43
        s_mul_i32 s40, s60, 7
        s_sub_u32 s40, s40, 64
        s_cmp_ge_u32 s60, 24
        s_cselect_b32 s42, s40, s42
        s_cselect_b32 s43, 7, s43
        s_sub_u32 s40, s61, 1
        s_add_u32 s42, s42, s40
        s_mul_i32 s52, s42, 205
        s_lshr_b32 s52, s52, 10
        s_mul_i32 s48, s52, 5
        s_sub_u32 s48, s42, s48
        s_cmp_lt_u32 s40, s43
        s_cselect_b32 s41, 4, 0
        s_cmp_lt_u32 s60, 24
        s_cselect_b32 s42, 1, 0
        s_cmp_eq_u32 s61, 0
        s_cselect_b32 s41, s42, s41
        s_cselect_b32 s48, s60, s48"""

    def role_sgprs():
        for x in ROLE_PROG.split("\n"):
            A(x)
        dn_index()

    A.label("L_g3")
    role_sgprs()
    addr_sb("v5", "v13")
    addr_gu("v20", "v13")
    A("s_lshl_b32 s42, s2, 10")
    A(f"s_add_u32 s42, s42, {W_REC}")
    A("s_lshl_b32 s64, s60, 8")
    A(f"s_add_u32 s64, s64, {W_TK}")
    A("v_mov_b32 v21, s64")
    A("v_mov_b32 v22, 0")
    for i in range(4):
        A(f"v_mov_b32 v{24+i}, 0")
    A(f"ds_write_b128 v22, v[24:27] offset:{FL}")
    A(f"ds_write_b128 v22, v[24:27] offset:{FL+16}")
    A("v_lshlrev_b32 v16, 4, v2")
    A("v_add_u32 v16, s42, v16")
    for i in range(4):
        A(f"v_mov_b32 v{12+i}, -1")
    A("s_waitcnt lgkmcnt(0)")
    srd(4, 38, 39, None, W_SIZE)
    A(f"buffer_load_dword v{EP}, v23, s[4:7], 0 offen sc1")
    A("buffer_store_dwordx4 v[12:15], v16, s[4:7], 0 offen sc1")
    A("s_cmp_lg_u32 s61, 0")
    A("s_cbranch_scc1 L_notk")
    A("s_mov_b64 exec, 1")
    A("buffer_store_dword v22, v21, s[4:7], 0 offen sc1")
    A("s_mov_b64 exec, -1")
    A.label("L_notk")
    A("s_cmp_eq_u32 s41, 4")
    A("s_cbranch_scc0 L_clr_nsb")
    pt_stores(12, "v5")
    A("s_branch L_clr_done")
    A.label("L_clr_nsb")
    A("s_cmp_lg_u32 s61, 0")
    A("s_cbranch_scc1 L_clr_done")
    A("v_lshlrev_b32 v8, 9, v2")
    A("s_lshl_b32 s42, s60, 4")
    A(f"s_add_u32 s42, s42, {W_H}")
    A("s_cmp_lt_u32 s60, 16")
    A("s_cselect_b32 s43, 7, 3")
    A("s_mov_b32 exec_hi, 0")
    A("s_mov_b32 exec_lo, s43")
    A("buffer_store_dwordx4 v[12:15], v8, s[4:7], s42 offen sc1")
    A("s_mov_b64 exec, -1")
    A("s_cmp_eq_u32 s41, 1")
    A("s_cbranch_scc0 L_clr_done")
    hp_stores("v12", "v20")
    A.label("L_clr_done")
    if not nobar0:
        A("s_barrier")
    if noq:
        A("s_barrier")
    A("s_lshl_b32 s64, s2, 11")
    A(f"s_add_u32 s64, s64, {W_QX + 1536}")
    A("v_mov_b32 v12, s64")
    A("s_waitcnt vmcnt(0)")
    A(f"v_add_u32 v15, 1, v{EP}")
    A("v_mov_b32 v14, 0")
    A("s_mov_b64 exec, 1")
    A("buffer_store_dwordx2 v[14:15], v12, s[4:7], 0 offen sc1")
    A("s_mov_b64 exec, -1")
    A.label("L_gather")
    A("s_lshl_b32 s62, s3, 1")
    A("s_lshl_b32 s63, s60, 3")
    A("s_add_u32 s63, s63, s62")
    A("s_lshl_b32 s63, s63, 11")
    A(f"s_add_u32 s63, s63, {W_QX}")
    A("s_mul_i32 s64, s62, 768")
    A(f"s_add_u32 s64, s64, {QP}")
    A("v_lshlrev_b32 v32, 4, v2")
    A("v_add_u32 v32, s63, v32")
    A("v_cmp_gt_u32 vcc, 32, v2")
    A("v_add_u32 v33, 1024, v32")
    A(f"v_add_u32 v34, {2048 - 512}, v32")
    A("v_cndmask_b32 v33, v34, v33, vcc")
    A(f"v_add_u32 v34, {2048 + 512}, v32")
    A("v_lshlrev_b32 v35, 3, v2")
    A("v_add_u32 v35, s64, v35")
    A("v_add_u32 v36, 512, v35")
    A(f"v_add_u32 v37, {768 - 256}, v35")
    A("v_cndmask_b32 v36, v37, v36, vcc")
    A(f"v_add_u32 v37, {768 + 256}, v35")
    A("v_lshrrev_b32 v38, 5, v2")
    A("v_lshlrev_b32 v38, 11, v38")
    A(f"s_add_u32 s64, s63, 1540")
    A("v_add_u32 v38, s64, v38")
    A(f"v_add_u32 v15, 1, v{EP}")
    A(f"s_mov_b32 s58, {SPIN}")
    A.label("L_qx")
    for i in range(3):
        A(f"buffer_load_dwordx4 v[{40+4*i}:{43+4*i}], v{32+i}, s[4:7], 0 offen sc1")
    A("buffer_load_dword v39, v38, s[4:7], 0 offen sc1")
    A("s_waitcnt vmcnt(0)")
    A("v_xor_b32 v52, v41, v15")
    A("v_xor_b32 v53, v43, v15")
    A("v_xor_b32 v54, v45, v15")
    A("v_xor_b32 v55, v47, v15")
    A("v_xor_b32 v56, v49, v15")
    A("v_xor_b32 v57, v51, v15")
    A("v_xor_b32 v58, v39, v15")
    A("v_or3_b32 v52, v52, v53, v54")
    A("v_or3_b32 v55, v55, v56, v57")
    A("v_or3_b32 v52, v52, v55, v58")
    A("v_cmp_ne_u32 vcc, 0, v52")
    A("s_cbranch_vccz L_qx_ok")
    A("s_sub_u32 s58, s58, 1")
    A("s_cbranch_scc0 L_qx")
    A.label("L_qx_ok")
    for i in range(3):
        A(f"ds_write2_b32 v{35+i}, v{40+4*i}, v{42+4*i} offset0:0 offset1:1")
    A("v_readfirstlane_b32 s59, v15")
    A("s_waitcnt lgkmcnt(0)")
    pstamp(8)
    if not noq:
        A("s_barrier")
    if prio:
        A("s_setprio 0")
    stamp(1)

    if stamps:
        for n in ((2, 9, 10) if pst else range(2, 11)):
            A(f"s_mov_b32 s{70+2*n}, 0")
            A(f"s_mov_b32 s{71+2*n}, 0")
    A("v_mov_b32 v11, 0")
    A("s_mov_b32 s56, 0x05040100")
    A("s_mov_b32 s57, 0x07060302")
    A("s_mov_b32 s51, 0xffff0000")
    A(f"s_mov_b32 s69, {LOG2E:#x}")
    A("s_cmp_eq_u32 s3, 3")
    A("s_cbranch_scc1 L_pub")
    role_sgprs()
    if mdry:
        A("s_cmp_lg_u32 s3, 0")
        A("s_cbranch_scc1 L_disp")
        A("s_mov_b32 s50, 1")
        A(f"v_lshlrev_b32 v{T0}, 4, v2")
        A(f"v_mov_b32 v{T3}, 0")
        A(f"v_mov_b32 v{VZ}, 0")
        A(f"v_mov_b32 v{VONE}, 1")
        A("s_branch L_merge")
    A("s_branch L_disp")
    A.label("L_pub")
    A("s_cmp_lg_u32 s61, 0")
    A("s_cbranch_scc1 L_disp")
    xcc_add(42)
    A("v_mov_b32 v13, s42")
    A("s_mov_b64 exec, 1")
    A("global_atomic_add v11, v13, s[36:37]")
    A("s_mov_b64 exec, -1")
    A.label("L_disp")
    A("s_cmp_eq_u32 s41, 4")
    A("s_cbranch_scc1 L_sb")
    A("s_cmp_eq_u32 s54, 0xffff")
    A("s_cbranch_scc1 L_disp2")
    DN_RAW, DN_OUT = 48, 144
    A("s_lshl_b32 s42, s54, 6")
    A("s_mul_i32 s43, s3, %d" % (384 * 1280))
    A("s_add_u32 s42, s42, s43")
    A("s_sub_u32 s43, %d, s42" % (1536 * 1280))
    srd(8, 32, 33, "s42", "s43")
    A("v_lshrrev_b32 v16, 2, v2")
    A("v_mul_u32_u24 v16, %d, v16" % (24 * 1280))
    A("v_and_b32 v13, 3, v2")
    A("v_lshl_add_u32 v16, v13, 4, v16")
    for ip in range(12):
        r = DN_RAW + 8 * ip
        A(f"s_mov_b32 s42, {ip*2560}")
        if not nopf:
            A(f"buffer_load_dwordx4 v[{r}:{r+3}], v16, s[8:11], s42 offen nt")
            A(f"buffer_load_dwordx4 v[{r+4}:{r+7}], v16, s[8:11], s42 offen offset:1280 nt")
    A("s_mul_i32 s42, s3, 24576")
    A(f"s_add_u32 s42, s42, {DW}")
    A("v_lshl_add_u32 v17, v2, 4, s42")
    for ip in range(12):
        r = DN_RAW + 8 * ip
        A(f"s_waitcnt vmcnt({2 * (11 - ip)})")
        for i in range(4):
            A(f"v_perm_b32 v{DN_OUT+8*ip+2*i}, v{r+4+i}, v{r+i}, s56")
            A(f"v_perm_b32 v{DN_OUT+8*ip+2*i+1}, v{r+4+i}, v{r+i}, s57")
        for j in range(2):
            A(f"ds_write_b128 v17, v[{DN_OUT+8*ip+4*j}:{DN_OUT+8*ip+4*j+3}] offset:{1024*(2*ip+j)}")
    A.label("L_disp2")
    if dry:
        A("s_cmp_lg_u32 s61, 0")
        A("s_cbranch_scc1 L_disp3")
        A("s_mov_b32 s49, 0")
        A("s_mov_b32 s46, 0")
        A("s_mov_b32 s47, 0")
        A("s_mov_b32 s53, 0")
        A("s_mov_b32 s55, 0")
        A("v_mov_b32 v3, 0")
        A("v_mov_b32 v23, 0")
        A("v_mov_b32 v22, 0")
        A("s_branch L_red")
        A.label("L_disp3")
    A("s_cmp_eq_u32 s41, 1")
    A("s_cbranch_scc1 L_gu")
    A("s_cmp_lg_u32 s61, 0")
    A("s_cbranch_scc1 L_fin")
    handshake("L_hs_dn", True)
    signal()
    stamp(3)
    A("s_branch L_fin")

    A.label("L_sb")
    V_H1, V_B = 4, 5
    WO_SP, WO_RAW = 207, 208
    addr_sb(f"v{V_B}", "v13")
    A("v_and_b32 v12, 15, v2")
    A("v_lshrrev_b32 v13, 4, v2")
    A("v_mul_u32_u24 v13, 12, v13")
    A("s_mul_i32 s42, s3, 48")
    A("v_add3_u32 v13, v13, v12, s42")
    A("v_min_u32 v14, 13, v12")
    A("v_add_u32 v14, 180, v14")
    A("v_cmp_gt_u32 vcc, 12, v12")
    A("s_nop 1")
    A("v_cndmask_b32 v13, v14, v13, vcc")
    A(f"v_lshlrev_b32 v{V_H1}, 2, v13")
    A("s_mul_i32 s42, s52, 192")
    A("s_mul_i32 s43, s3, 48")
    A("s_add_u32 s42, s42, s43")
    A("s_mul_i32 s42, s42, 1280")
    A("s_lshl_b32 s43, s48, 8")
    A("s_add_u32 s42, s42, s43")
    A("s_sub_u32 s43, %d, s42" % (6144 * 1280))
    srd(8, 24, 25, "s42", "s43")
    A("v_lshlrev_b32 v16, 2, v2")
    A("s_lshl_b32 s42, s52, 13")
    A(f"s_add_u32 s62, s42, {W_REC}")
    A("s_add_u32 s63, s62, 4096")
    A("v_lshlrev_b32 v7, 3, v2")
    A("s_lshl_b32 s42, s3, 9")
    A("v_add_u32 v6, s42, v7")
    if not nopf:
        for r in range(48):
            if r % 3 == 0:
                A(f"s_mov_b32 s42, {(r//3)*3840}")
            A(f"buffer_load_dword v{WO_RAW+r}, v16, s[8:11], s42 offen offset:{(r%3)*1280} nt")
    wo_units = [([WO_RAW + 2 * p], [WO_RAW + 2 * p + 1]) for p in range(24)]
    WO_P, _ = pair_perm(wo_units, WO_SP, [46 - 2 * p for p in range(24)])
    stamp(3)
    first_pass("sb")
    A.label("L_sb_top")

    def sb_issue(b):
        for i in range(8):
            so = "s62" if i < 4 else "s63"
            A(f"buffer_load_dword v{b+i}, v{V_H1}, s[4:7], {so} offen offset:{(i%4)*1024} sc1")
    ppoll("L_h1", [32 + 8 * k for k in range(nsb or nsets)], 8, sb_issue, 8, lambda b: copyregs(16, b, 8))
    stamp(5)
    if diag:
        A("s_mov_b32 s84, s58")
        A("s_mov_b32 s85, 0")
    A("v_max3_f32 v12, v16, v17, v18")
    A("v_max3_f32 v13, v19, v20, v21")
    A("v_max3_f32 v12, v12, v22, v23")
    A("v_max_f32 v12, v12, v13")
    A("s_nop 1")
    A("v_mov_b32_dpp v12, v12 row_newbcast:12 row_mask:0xf bank_mask:0xf")
    A("s_nop 1")
    for i in range(8):
        A(f"v_sub_f32_dpp v{24+i}, v{16+i}, v12 row_newbcast:12 row_mask:0xf bank_mask:0xf")
    for i in range(8):
        A(f"v_mul_f32 v{24+i}, s69, v{24+i}")
    for i in range(8):
        A(f"v_exp_f32 v{24+i}, v{24+i}")
    A("s_nop 0")
    A("v_mul_f32 v13, v16, v24")
    A("v_mul_f32 v14, v20, v28")
    for i in range(1, 4):
        A(f"v_fmac_f32 v13, v{16+i}, v{24+i}")
        A(f"v_fmac_f32 v14, v{20+i}, v{28+i}")
    A("v_add_f32 v13, v13, v14")
    A("s_nop 1")
    A("v_mov_b32_dpp v14, v13 row_newbcast:13 row_mask:0xf bank_mask:0xf")
    A("v_rcp_f32 v14, v14")
    A("s_nop 0")
    A("v_mul_f32 v13, v13, v14")
    A("s_nop 1")
    A("v_mov_b32_dpp v14, v13 quad_perm:[1,0,3,2] row_mask:0xf bank_mask:0xf")
    A("v_cvt_pk_bf16_f32 v13, v13, v14")
    A("s_nop 0")

    def psg(p):
        return 16 + p if p < 16 else 8 + (p - 16)

    for p in range(24):
        lane = (p // 6) * 16 + 2 * (p % 6)
        A(f"v_readlane_b32 s{psg(p)}, v13, {lane}")
    A("v_mov_b32 v14, 0")
    A("v_mov_b32 v15, 0")
    A("v_mov_b32 v16, 0")
    A("v_mov_b32 v17, 0")
    for p in range(24):
        a = 14 + 2 * (p % 2)
        A(f"v_dot2c_f32_bf16 v{a}, s{psg(p)}, v{WO_P[p][0]}")
        A(f"v_dot2c_f32_bf16 v{a+1}, s{psg(p)}, v{WO_P[p][1]}")
    A("s_nop 1")
    A("v_add_f32 v14, v14, v16")
    A("v_add_f32 v15, v15, v17")
    A(f"ds_write_b64 v6, v[14:15] offset:{AP}")
    arrive_issue()
    for w in range(4):
        A(f"ds_read_b64 v[{16+2*w}:{17+2*w}], v7 offset:{AP+512*w}")
    A("s_waitcnt lgkmcnt(0)")
    arrive_check("L_sb_next")
    A("v_add_f32 v16, v16, v18")
    A("v_add_f32 v17, v17, v19")
    A("v_add_f32 v20, v20, v22")
    A("v_add_f32 v21, v21, v23")
    A("v_add_f32 v16, v16, v20")
    A("v_add_f32 v17, v17, v21")
    A("s_cmp_eq_u32 s49, 0")
    A("s_cbranch_scc1 L_sb_next")
    pt_stores(16, f"v{V_B}")
    stamp(6)
    if diag:
        A("s_waitcnt vmcnt(0)")
        stamp(9)
    next_pass("sb", "L_sb_top", True)

    A.label("L_gu")
    addr_gu("v6", "v13")
    A("v_lshrrev_b32 v14, 4, v2")
    A("v_and_b32 v15, 15, v2")
    A("v_mul_u32_u24 v4, 80, v14")
    A("s_mul_i32 s42, s3, 320")
    A(f"s_add_u32 s42, s42, {W_H}")
    A("v_add_u32 v4, s42, v4")
    A("v_and_b32 v13, 3, v2")
    A("v_lshl_add_u32 v5, v13, 2, v4")
    A("v_add_u32 v5, 64, v5")
    A("v_lshl_add_u32 v4, v15, 2, v4")
    A("v_lshl_add_u32 v13, v15, 2, v14")
    A("s_lshl_b32 s42, s3, 9")
    A(f"s_add_u32 s42, s42, {GP}")
    A("v_lshl_add_u32 v9, v13, 3, s42")
    GU_SP, GU_RAW = 45, 46
    A("s_lshl_b32 s42, s48, 7")
    A("s_mul_i32 s43, s3, %d" % (160 * 3072))
    A("s_add_u32 s42, s42, s43")
    A("s_sub_u32 s43, %d, s42" % (640 * 3072))
    srd(8, 28, 29, "s42", "s43")
    srd(12, 30, 31, "s42", "s43")
    A("v_mul_u32_u24 v16, %d, v14" % (40 * 3072))
    A("v_lshl_add_u32 v16, v15, 3, v16")
    units = []
    for ip in range(20):
        A(f"s_mov_b32 s42, {ip*6144}")
        for m in range(2):
            sr = 8 if m == 0 else 12
            r = GU_RAW + 8 * ip + 4 * m
            if not nopf:
                A(f"buffer_load_dwordx2 v[{r}:{r+1}], v16, s[{sr}:{sr+3}], s42 offen nt")
                A(f"buffer_load_dwordx2 v[{r+2}:{r+3}], v16, s[{sr}:{sr+3}], s42 offen offset:3072 nt")
            units.append(([r, r + 1], [r + 2, r + 3]))
    n = len(units)
    GU_Pl, sp = pair_perm(units, GU_SP, [min(63, 2 * (n - 1 - k)) for k in range(n)])
    GU_P = [[GU_Pl[2 * ip + m] for m in range(2)] for ip in range(20)]
    GA = 208

    def gu_reduce(filler):
        filler = list(filler)

        def fill(k):
            for _ in range(k):
                A(filler.pop(0) if filler else "s_nop 0")
        fill(1)
        A("s_nop 1")
        for m in range(2):
            for c in range(2):
                A(f"v_permlane32_swap_b32 v{GA+4*m+c}, v{GA+4*m+c+2}")
        for m in range(2):
            for c in range(2):
                A(f"v_add_f32 v{GA+4*m+c}, v{GA+4*m+c}, v{GA+4*m+c+2}")
        A("s_nop 0")
        for m in range(2):
            A(f"v_permlane16_swap_b32 v{GA+4*m}, v{GA+4*m+1}")
        A("s_nop 0")
        for m in range(2):
            A(f"v_add_f32 v{16+m}, v{GA+4*m}, v{GA+4*m+1}")
        for x in filler:
            A(x)

    A("s_mov_b32 s46, 0x3f803f80")
    A(f"v_mov_b32 v17, s46")
    for ip in range(20):
        for m in range(2):
            for c in range(4):
                if ip == 0:
                    A(f"v_dot2_f32_bf16 v{GA+4*m+c}, v17, v{GU_P[ip][m][c]}, 0")
                else:
                    A(f"v_dot2c_f32_bf16 v{GA+4*m+c}, v17, v{GU_P[ip][m][c]}")
    gu_reduce([])
    A(f"ds_write_b64 v9, v[16:17] offset:{GC-GP}")
    A("v_mov_b32 v26, s46")
    A("v_mov_b32 v27, 0x3e803e80")
    A("v_lshrrev_b32 v24, 5, v2")
    A("s_lshl_b32 s42, s3, 3")
    A("v_lshl_add_u32 v24, v24, 2, s42")
    A("v_lshlrev_b32 v25, 3, v2")
    stamp(3)
    first_pass("gu")
    A.label("L_gu_top")
    HR1, HR2 = 32, 33
    A.label("L_h3")
    A(f"buffer_load_dword v{HR1}, v4, s[4:7], 0 offen sc1")
    A(f"buffer_load_dword v{HR2}, v5, s[4:7], 0 offen sc1")
    A("s_waitcnt vmcnt(0)")
    A(f"v_max_u32 v12, v{HR1}, v{HR2}")
    A("v_cmp_eq_u32 vcc, -1, v12")
    A("s_cbranch_vccz L_h3_ok")
    if gsleep:
        A(f"s_sleep {gsleep}")
    A("s_sub_u32 s58, s58, 1")
    A("s_cbranch_scc0 L_h3")
    A.label("L_h3_ok")
    stamp(7)
    pre = [f"v_dot2_f32_bf16 v18, v{HR1}, v26, 0", f"v_dot2_f32_bf16 v20, v{HR2}, v{HR2}, 0",
           f"v_dot2_f32_bf16 v19, v{HR1}, v{HR1}, 0", f"v_dot2_f32_bf16 v18, v{HR2}, v27, v18"]
    red = pre + [None, "v_fmac_f32 v19, 0x3e800000, v20", None, "v_permlane32_swap_b32 v18, v19", "v_add_f32 v18, v18, v19", "v_mov_b32 v19, v18", None,
                 "v_permlane16_swap_b32 v18, v19", "v_add_f32 v18, v18, v19", None]
    for r in (8, 4, 2, 1):
        red += [f"v_add_f32_dpp v18, v18, v18 row_ror:{r} row_mask:0xf bank_mask:0xf", None]
    cnt = 0
    if twice:
        A("s_mov_b32 s45, 2")
        A.label("L_twice")
        A("s_mov_b32 s88, s82")
        A("s_mov_b32 s89, s83")
    for ip in range(20):
        src = HR1 if ip < 16 else HR2
        for m in range(2):
            for c in range(4):
                A(f"v_dot2c_f32_bf16_dpp v{GA+4*m+c}, v{src}, v{GU_P[ip][m][c]} row_newbcast:{ip % 16} row_mask:0xf bank_mask:0xf")
                cnt += 1
                if cnt % 3 == 0 and red:
                    x = red.pop(0)
                    if x:
                        A(x)
    assert not red
    if gfine:
        stamp(6)
    if twice:
        A("s_sub_u32 s45, s45, 1")
        A("s_cmp_lg_u32 s45, 0")
        A("s_cbranch_scc1 L_twice")
    gu_reduce([])
    A("s_mov_b32 exec_lo, 1")
    A("s_mov_b32 exec_hi, 1")
    A(f"ds_write_b32 v24, v18 offset:{ST}")
    A("s_mov_b64 exec, -1")
    if gfine and not twice:
        stamp(9)
    A("ds_write_b64 v9, v[16:17]")
    arrive_issue()
    A(f"ds_read_b128 v[28:31], v11 offset:{ST}")
    A(f"ds_read_b128 v[36:39], v11 offset:{ST+16}")
    for w in range(4):
        A(f"ds_read_b64 v[{16+2*w}:{17+2*w}], v25 offset:{GP+512*w}")
    for w in range(4):
        A(f"ds_read_b64 v[{208+2*w}:{209+2*w}], v25 offset:{GC+512*w}")
    A("s_waitcnt lgkmcnt(8)")
    arrive_check("L_gu_next")
    if gfine:
        stamp(10)
    A("v_pk_add_f32 v[28:29], v[28:29], v[30:31]")
    A("v_pk_add_f32 v[36:37], v[36:37], v[38:39]")
    A("v_pk_add_f32 v[28:29], v[28:29], v[36:37]")
    A(f"v_mul_f32 v28, {f32(1/640)}, v28")
    A(f"v_mul_f32 v29, {f32(1/640)}, v29")
    A("v_fma_f32 v29, -v28, v28, v29")
    A(f"v_add_f32 v29, {f32(1e-5)}, v29")
    A("v_rsq_f32 v29, v29")
    A("s_waitcnt lgkmcnt(0)")
    A("v_pk_add_f32 v[16:17], v[16:17], v[18:19]")
    A("v_pk_add_f32 v[20:21], v[20:21], v[22:23]")
    A("v_pk_add_f32 v[208:209], v[208:209], v[210:211]")
    A("v_pk_add_f32 v[212:213], v[212:213], v[214:215]")
    A("v_pk_add_f32 v[16:17], v[16:17], v[20:21]")
    A("v_pk_add_f32 v[208:209], v[208:209], v[212:213]")
    A("v_fma_f32 v16, -v28, v208, v16")
    A("v_fma_f32 v17, -v28, v209, v17")
    A("v_mul_f32 v16, v16, v29")
    A("v_mul_f32 v17, v17, v29")
    bf16r("v16", "v16")
    A("v_mul_f32 v18, 0xbfb8aa3b, v16")
    A("v_exp_f32 v18, v18")
    bf16r("v17", "v17")
    A("v_add_f32 v18, 1.0, v18")
    A("v_rcp_f32 v18, v18")
    A("s_nop 0")
    bf16r("v18", "v18")
    A("v_mul_f32 v18, v18, v17")
    A("s_nop 1")
    A("v_mov_b32_dpp v19, v18 quad_perm:[1,0,3,2] row_mask:0xf bank_mask:0xf")
    A("v_cvt_pk_bf16_f32 v18, v18, v19")
    A("s_nop 1")
    A("v_mov_b32_dpp v19, v18 quad_perm:[0,0,2,2] row_mask:0xf bank_mask:0xf")
    by_locality("L_hps", lambda fl: hp_stores("v19", "v6", fl))
    stamp(8)
    next_pass("gu", "L_gu_top", True)

    A.label("L_tail")
    A("s_waitcnt vmcnt(0)")
    A("v_mov_b32 v11, 0")
    A("v_mov_b32 v3, 1")
    A("s_mov_b32 s47, 3")
    A("s_mov_b32 s49, 1")
    A(f"s_mov_b32 s46, {SPIN * 4}")
    A("s_mov_b32 s51, 0xffff0000")
    srd(4, 38, 39, None, W_SIZE)
    dn_index()
    A("s_lshl_b32 s55, s3, 5")
    A("s_add_u32 s55, s55, s60")
    srd(8, 16, 17, None, 1280)
    A("v_and_b32 v14, 1, v2")
    A("v_lshrrev_b32 v15, 5, v2")
    A("v_lshlrev_b32 v20, 3, v14")
    A("v_lshl_add_u32 v20, v15, 2, v20")
    A("s_min_u32 s42, s55, 79")
    A("s_lshl_b32 s42, s42, 4")
    A("buffer_load_dword v21, v20, s[8:11], s42 offen")
    A("v_lshl_add_u32 v22, v14, 1, v15")
    A(f"s_add_u32 s42, s42, {W_H}")
    A("v_lshl_add_u32 v22, v22, 2, s42")
    A("s_lshl_b32 s42, s55, 10")
    A(f"s_add_u32 s42, s42, {W_PT}")
    A("v_lshl_add_u32 v23, v2, 4, s42")
    A(f"s_mov_b32 s58, {SPIN}")
    A.label("L_dw")
    A(f"ds_read_b32 v12, v11 offset:{FL+28}")
    A(f"ds_read_b32 v13, v11 offset:{FL}")
    A(f"ds_read_b32 v14, v11 offset:{FL+16}")
    A("s_waitcnt lgkmcnt(0)")
    A("v_cmp_eq_u32 vcc, 4, v12")
    A("s_cbranch_vccnz L_dw_ok")
    A("s_sleep 2")
    A("s_sub_u32 s58, s58, 1")
    A("s_cbranch_scc0 L_dw")
    A.label("L_dw_ok")
    A("v_readfirstlane_b32 s59, v13")
    A("v_readfirstlane_b32 s53, v14")
    A("s_sub_u32 s53, s53, 1")
    A("s_waitcnt vmcnt(0)")
    A("v_lshlrev_b32 v20, 16, v21")
    A("v_and_b32 v21, s51, v21")
    DN_W = 48

    def dn_setup():
        A("s_mul_i32 s42, s3, 24576")
        A(f"s_add_u32 s42, s42, {DW}")
        A("v_lshl_add_u32 v17, v2, 4, s42")
        for j in range(24):
            A(f"ds_read_b128 v[{DN_W+4*j}:{DN_W+4*j+3}], v17 offset:{1024*j}")
    A("s_cmp_eq_u32 s54, 0xffff")
    A("s_cbranch_scc1 L_red")
    dn_setup()
    A("s_waitcnt lgkmcnt(0)")
    A.label("L_red")
    A("s_cmp_ge_u32 s55, 80")
    A("s_cbranch_scc1 L_red_done")
    A("s_mov_b32 s58, s46")
    stamp(5)
    if nred:
        ppoll("L_h2", [144 + 4 * k for k in range(nred)], 4,
              lambda b: A(f"buffer_load_dwordx4 v[{b}:{b+3}], v23, s[4:7], 0 offen sc1"), 1, lambda b: copyregs(24, b, 4), rstag, rstag)
    else:
        A.label("L_h2")
        A("buffer_load_dwordx4 v[24:27], v23, s[4:7], 0 offen sc1")
        A("s_waitcnt vmcnt(0)")
        A("v_max3_u32 v12, v24, v25, v26")
        A("v_max_u32 v12, v12, v27")
        A("v_cmp_eq_u32 vcc, -1, v12")
        A("s_cbranch_vccz L_h2_ok")
        if redsleep:
            A(f"s_sleep {redsleep}")
        A("s_sub_u32 s58, s58, 1")
        A("s_cbranch_scc0 L_h2")
        A.label("L_h2_ok")
    stamp(6)
    A("v_permlane32_swap_b32 v24, v26")
    A("v_permlane32_swap_b32 v25, v27")
    A("s_nop 0")
    A("v_add_f32 v24, v24, v26")
    A("v_add_f32 v25, v25, v27")
    A("v_mov_b32 v26, v24")
    A("v_mov_b32 v27, v25")
    A("s_nop 0")
    A("v_permlane16_swap_b32 v24, v26")
    A("v_permlane16_swap_b32 v25, v27")
    A("s_nop 0")
    A("v_add_f32 v24, v24, v26")
    A("v_add_f32 v25, v25, v27")
    for r in (8, 4, 2):
        A("s_nop 0")
        dpp_add("v24", "v24", f"row_ror:{r}")
        dpp_add("v25", "v25", f"row_ror:{r}")
    A("v_cvt_pk_bf16_f32 v26, v24, v25")
    A("v_lshlrev_b32 v24, 16, v26")
    A("v_and_b32 v25, s51, v26")
    A("v_add_f32 v24, v24, v20")
    A("v_add_f32 v25, v25, v21")
    A("v_cvt_pk_bf16_f32 v26, v24, v25")
    A("s_mov_b32 exec_lo, 3")
    A("s_mov_b32 exec_hi, 3")
    by_locality("L_hst", lambda fl: A(f"buffer_store_dword v26, v22, s[4:7], 0 offen {fl}"))
    A("s_mov_b64 exec, -1")
    stamp(7)
    A.label("L_red_done")
    A("s_cmp_eq_u32 s54, 0xffff")
    A("s_cbranch_scc1 L_dn_fin")
    A(f"s_and_b32 s42, s54, {hprep - 1}")
    A(f"s_mul_i32 s42, s42, {HP_STR}")
    A("s_mul_i32 s43, s3, 768")
    A("s_add_u32 s42, s42, s43")
    A(f"s_add_u32 s42, s42, {W_HP}")
    A("v_mul_u32_u24 v14, 12, v2")
    A("v_add_u32 v6, s42, v14")
    A("v_and_b32 v14, 3, v2")
    A("v_lshlrev_b32 v14, 3, v14")
    A("v_bfe_u32 v15, v2, 5, 1")
    A("v_lshl_add_u32 v14, v15, 2, v14")
    A("v_bfe_u32 v15, v2, 4, 1")
    A("v_lshl_add_u32 v14, v15, 1, v14")
    A("v_bfe_u32 v15, v2, 3, 1")
    A("v_add_u32 v14, v14, v15")
    A("s_lshl_b32 s42, s3, 7")
    A(f"s_add_u32 s42, s42, {DP}")
    A("v_lshlrev_b32 v14, 2, v14")
    A("v_add_u32 v7, s42, v14")
    A("s_lshl_b32 s42, s54, 6")
    A(f"s_add_u32 s42, s42, {W_H}")
    A("v_bfe_u32 v14, v2, 1, 4")
    A("v_lshlrev_b32 v14, 2, v14")
    A("v_add_u32 v8, s42, v14")
    A("v_and_b32 v14, 1, v2")
    A("v_lshlrev_b32 v14, 4, v14")
    A("v_sub_u32 v9, 16, v14")
    for c in range(8):
        A(f"v_mov_b32 v{32+c}, 0")
    A("v_and_b32 v13, 31, v2")
    A("v_lshlrev_b32 v13, 2, v13")
    srd(8, 34, 35, None, 1280)
    A("s_lshl_b32 s43, s54, 6")
    A("v_lshlrev_b32 v14, 1, v2")
    A("s_waitcnt lgkmcnt(0)")
    stamp(3)
    if dnwait:
        A("s_cmp_ge_u32 s60, 24")
        A("s_cbranch_scc1 L_dg_ok")
        if dry:
            A("s_cmp_eq_u32 s49, 0")
            A("s_cbranch_scc1 L_dg_ok")
        lds_wait("L_dg", 20, 2, SPIN * 4)
    A("s_mov_b32 s58, s46")
    stamp(4)
    A.label("L_h4")
    A("buffer_load_dwordx3 v[16:18], v6, s[4:7], 0 offen sc1")
    A("buffer_load_dword v28, v8, s[4:7], 0 offen sc1")
    A("s_waitcnt vmcnt(0)")
    A("v_max3_u32 v19, v16, v17, v18")
    A("v_max_u32 v19, v19, v28")
    A("v_cmp_eq_u32 vcc, -1, v19")
    A("s_cbranch_vccz L_h4_ok")
    if dnsleep:
        A(f"s_sleep {dnsleep}")
    A("s_sub_u32 s58, s58, 1")
    A("s_cbranch_scc0 L_h4")
    A.label("L_h4_ok")
    stamp(9)
    for ip in range(12):
        q = ip // 3
        for c in range(8):
            A(f"v_dot2c_f32_bf16_dpp v{32+c}, v{16+ip%3}, v{DN_W+8*ip+c} quad_perm:[{q},{q},{q},{q}] row_mask:0xf bank_mask:0xf")
    A("v_lshlrev_b32 v28, v9, v28")
    A("v_and_b32 v28, s51, v28")
    A("s_nop 0")
    for c in range(4):
        A(f"v_permlane32_swap_b32 v{32+c}, v{36+c}")
    for c in range(4):
        A(f"v_add_f32 v{32+c}, v{32+c}, v{36+c}")
    A("s_nop 0")
    for c in range(2):
        A(f"v_permlane16_swap_b32 v{32+c}, v{34+c}")
    for c in range(2):
        A(f"v_add_f32 v{32+c}, v{32+c}, v{34+c}")
    A("s_nop 0")
    dpp_add("v34", "v32", "row_ror:8", "0x3")
    A("s_nop 1")
    dpp_add("v34", "v33", "row_ror:8", "0xc")
    A("s_nop 1")
    dpp_add("v35", "v34", "row_shl:4", "0x5")
    A("s_nop 1")
    dpp_add("v35", "v34", "row_shr:4", "0xa")
    A("ds_write_b32 v7, v35")
    A("s_mov_b64 exec, 1")
    A(f"ds_add_rtn_u32 v12, v11, v3 offset:{FL+12}")
    A("s_mov_b64 exec, -1")
    for w in range(4):
        A(f"ds_read_b32 v{16+w}, v13 offset:{DP+128*w}")
    A("s_waitcnt lgkmcnt(0)")
    arrive_check("L_dn_fin")
    A("v_add_f32 v16, v16, v17")
    A("v_add_f32 v18, v18, v19")
    A("v_add_f32 v16, v16, v18")
    bf16r("v16", "v16")
    A("v_add_f32 v16, v16, v28")
    A("s_nop 1")
    A("v_mov_b32_dpp v17, v16 quad_perm:[1,0,3,2] row_mask:0xf bank_mask:0xf")
    A("v_cvt_pk_bf16_f32 v16, v16, v17")
    if dry:
        A("s_cmp_eq_u32 s49, 0")
        A("s_cbranch_scc1 L_dn_fin")
    A("s_mov_b32 s44, 0x55555555")
    A("s_mov_b32 s45, 0")
    A("s_mov_b64 exec, s[44:45]")
    A(f"buffer_store_dword v16, v14, s[8:11], s43 offen {outfl}")
    A("s_mov_b64 exec, -1")
    stamp(10)
    A("s_cmp_lg_u32 s54, 0")
    A("s_cbranch_scc1 L_dn_fin")
    A(f"v_mov_b32 v12, {W_EPOCH}")
    A("v_mov_b32 v13, s59")
    A("s_mov_b64 exec, 1")
    A("buffer_store_dword v13, v12, s[4:7], 0 offen sc1")
    A("s_mov_b64 exec, -1")
    A.label("L_dn_fin")
    if dry:
        A("s_cmp_eq_u32 s49, 0")
        A("s_cbranch_scc1 L_disp3")
    if stamps and dbgt:
        A("s_cmp_eq_u32 s90, 0")
        A("s_cbranch_scc1 L_dbgt_done")
        A("s_cmp_ge_u32 s60, 8")
        A("s_cbranch_scc1 L_dbgt_done")
        A("s_lshl_b32 s42, s60, 4")
        A("s_add_u32 s42, s42, 32")
        A("v_mov_b32 v3, s42")
        A("s_mov_b64 exec, 1")
        for k, n in enumerate((1, 2, 9, 10)):
            A(f"s_sub_u32 s43, s{70+2*n}, s70")
            A("v_mov_b32 v4, s43")
            A(f"global_store_dword v3, v4, s[36:37] offset:{4*k}")
            A("s_nop 1")
        A("s_mov_b64 exec, -1")
        A.label("L_dbgt_done")
    if stamps:
        A("s_waitcnt vmcnt(0)")
        A("s_lshl_b32 s64, s2, 9")
        A("s_lshl_b32 s65, s3, 7")
        A("s_add_u32 s64, s64, s65")
        A(f"s_add_u32 s64, s64, {W_ST2}")
        A("v_mov_b32 v3, s64")
        A("s_mov_b64 exec, 1")
        for n in range(11):
            A(f"v_mov_b32 v4, s{70+2*n}")
            A(f"v_mov_b32 v5, s{71+2*n}")
            A(f"global_store_dwordx2 v3, v[4:5], s[38:39] offset:{8*n}")
            A("s_nop 1")
    if nred > 1:
        A("s_waitcnt vmcnt(0)")
    A("s_endpgm")
    for lab, emit in far:
        A.label(f"{lab}_far")
        if dry:
            A("s_cmp_eq_u32 s49, 0")
            A(f"s_cbranch_scc1 {lab}_done")
        emit("sc1")
        A(f"s_branch {lab}_done")

    A.label("L_fin")
    A("s_waitcnt vmcnt(0) lgkmcnt(0)" if (nsb or 1) > 1 else "s_waitcnt lgkmcnt(0)")
    if stamps:
        A("s_waitcnt vmcnt(0)")
        A("s_lshl_b32 s64, s2, 9")
        A("s_lshl_b32 s65, s3, 7")
        A("s_add_u32 s64, s64, s65")
        A(f"s_add_u32 s64, s64, {W_ST1}")
        A("v_mov_b32 v3, s64")
        A("s_mov_b64 exec, 1")
        for n in range(11):
            A(f"v_mov_b32 v4, s{70+2*n}")
            A(f"v_mov_b32 v5, s{71+2*n}")
            A(f"global_store_dwordx2 v3, v[4:5], s[38:39] offset:{8*n}")
            A("s_nop 1")
    A.label("L_end")
    A("s_endpgm")

    body_txt = "\n".join(A.L)
    out = [HDR.rstrip("\n"),
           "; Override launch geometry: 256 persistent workgroups (one per CU), 8 waves each.",
           f"; @launch grid=(256,1,1) block=(512,1,1) lds={LDS_BYTES}",
           '.amdgcn_target "amdgcn-amd-amdhsa--gfx950"',
           ".text", f".globl {KN}", ".p2align 8", f".type {KN},@function",
           body_txt,
           '.section .rodata,"a"', ".p2align 6", f".amdhsa_kernel {KN}",
           "  .amdhsa_next_free_vgpr 256", "  .amdhsa_next_free_sgpr 102", "  .amdhsa_accum_offset 256",
           "  .amdhsa_group_segment_fixed_size 0", "  .amdhsa_kernarg_size 96", "  .amdhsa_user_sgpr_count 2",
           "  .amdhsa_user_sgpr_kernarg_segment_ptr 1", "  .amdhsa_system_sgpr_workgroup_id_x 1",
           ".end_amdhsa_kernel", ""]
    return "\n".join(out)


if __name__ == "__main__":
    ap = argparse.ArgumentParser()
    ap.add_argument("-o", default="ka.s")
    ap.add_argument("--stamps", action="store_true")
    ap.add_argument("--pst", action="store_true")
    ap.add_argument("--noprio", action="store_true")
    ap.add_argument("--ns", type=int, default=27)
    ap.add_argument("--nopf", action="store_true")
    ap.add_argument("--hprep", type=int, default=2)
    ap.add_argument("--psleep", type=int, default=0)
    ap.add_argument("--diag", action="store_true")
    ap.add_argument("--nodnpair", action="store_true")
    ap.add_argument("--ptrep", type=int, default=1)
    ap.add_argument("--outfl", default="")
    ap.add_argument("--gdiag", action="store_true")
    ap.add_argument("--coarse", action="store_true")
    ap.add_argument("--gfine", action="store_true")
    ap.add_argument("--nolocal", action="store_true")
    ap.add_argument("--nodnwait", action="store_true")
    ap.add_argument("--dnsleep", type=int, default=0)
    ap.add_argument("--redsleep", type=int, default=0)
    ap.add_argument("--twice", action="store_true")
    ap.add_argument("--dry", action="store_true")
    ap.add_argument("--noq", action="store_true")
    ap.add_argument("--nobar0", action="store_true")
    ap.add_argument("--gsleep", type=int, default=0)
    ap.add_argument("--mall", action="store_true")
    ap.add_argument("--nsb", type=int, default=0)
    ap.add_argument("--stag", type=int, default=0)
    ap.add_argument("--stag0", type=int, default=0)
    ap.add_argument("--nred", type=int, default=0)
    ap.add_argument("--rstag", type=int, default=0)
    ap.add_argument("--dbgt", action="store_true")
    ap.add_argument("--sfine", action="store_true")
    a = ap.parse_args()
    t = gen(stamps=a.stamps, pst=a.pst, prio=not a.noprio, NS=a.ns, nopf=a.nopf, hprep=a.hprep, psleep=a.psleep,
            diag=a.diag, outfl=a.outfl, dnpair=not a.nodnpair, ptrep=a.ptrep, gdiag=a.gdiag, fine=not a.coarse, gfine=a.gfine, allow_local=not a.nolocal, dnwait=not a.nodnwait, dnsleep=a.dnsleep, redsleep=a.redsleep, twice=a.twice, dry=a.dry, noq=a.noq, sfine=a.sfine, dbgt=a.dbgt, mall=a.mall, nsb=a.nsb or None, stag=a.stag, stag0=a.stag0, nred=a.nred, rstag=a.rstag, gsleep=a.gsleep, nobar0=a.nobar0)
    open(a.o, "w").write(t)
    import hazard
    e = hazard.check(t)
    print(a.o, len(t), "bytes;", len(e), "hazards")
```
